```python
import torch

def _softmax(x, axis=-1):
    return torch.softmax(x, dim=axis)

def _gelu(x):
    return torch.nn.functional.gelu(x, approximate='tanh')

def _silu(x):
    return torch.nn.functional.silu(x)

def _sigmoid(x):
    return torch.sigmoid(x)

def _layernorm(x, axis=-1, eps=1e-05):
    m = x.mean(dim=axis, keepdim=True)
    v = x.var(dim=axis, keepdim=True, unbiased=False)
    return (x - m) / torch.sqrt(v + eps)

def _scatter_add(tgt, idx, src, axis=0):
    return tgt.clone().index_add_(axis, idx, src)

def _segment_sum(src, seg, n):
    out = torch.zeros((n,) + src.shape[1:], dtype=src.dtype)
    return out.index_add_(0, seg, src)

def _pad(x, pw):
    flat = tuple((v for pair in reversed(pw) for v in pair))
    return torch.nn.functional.pad(x, flat)
kernel_name = 'recurrent_scan__memory_aug_recurrent_mem_tr__glu_gated_reglu__prompt'

def setup_inputs():

    _w = lambda a: (lambda t: t.to(torch.bfloat16) if t.is_floating_point() else t)(torch.as_tensor(a))

    def _A_setup():
        B, S, Dm = (1, 2048, 1024)
        H, Dh = (32, 128)
        M, seg = (8, 32)
        seg = min(seg, S)
        S = S // seg * seg
        return {'x': _w((lambda *s: torch.randn(*s, dtype=torch.bfloat16) * 0.1)(B, S, Dm)), 'mem0': _w((lambda *s: torch.randn(*s, dtype=torch.bfloat16) * 1.6)(B, M, Dm)), 'Wq': _w((lambda *s: torch.randn(*s, dtype=torch.bfloat16) * 0.8)(Dm, H, Dh) * Dm ** (-0.5)), 'Wk': _w((lambda *s: torch.randn(*s, dtype=torch.bfloat16) * 0.8)(Dm, H, Dh) * Dm ** (-0.5)), 'Wv': _w((lambda *s: torch.randn(*s, dtype=torch.bfloat16) * 1.6)(Dm, H, Dh) * Dm ** (-0.5)), 'Wo': _w((lambda *s: torch.randn(*s, dtype=torch.bfloat16) * 1.6)(H, Dh, Dm) * (H * Dh) ** (-0.5)), 'seg_len': seg}
    _A_in = _A_setup()

    def _B_setup():
        B, S, D, F = (1, 2048, 1024, 3584)
        return {'x': _w((lambda *s: torch.randn(*s, dtype=torch.bfloat16) * 0.1)(B, S, D)), 'W_gate': _w((lambda *s: torch.randn(*s, dtype=torch.bfloat16) * 0.4)(D, F) * (2.0 / D) ** 0.5), 'W_up': _w((lambda *s: torch.randn(*s, dtype=torch.bfloat16) * 0.4)(D, F) * (2.0 / D) ** 0.5), 'W_down': _w((lambda *s: torch.randn(*s, dtype=torch.bfloat16) * 0.4)(F, D) * (1.0 / F) ** 0.5)}
    _B_in = _B_setup()
    return {'A_x': _A_in['x'], 'A_mem0': _A_in['mem0'], 'A_Wq': _A_in['Wq'], 'A_Wk': _A_in['Wk'], 'A_Wv': _A_in['Wv'], 'A_Wo': _A_in['Wo'], 'A_seg_len': _A_in['seg_len'], 'B_x': _B_in['x'], 'B_W_gate': _B_in['W_gate'], 'B_W_up': _B_in['W_up'], 'B_W_down': _B_in['W_down']}

def reference(A_x, A_mem0, A_Wq, A_Wk, A_Wv, A_Wo, A_seg_len, B_x, B_W_gate, B_W_up, B_W_down):

    def _A_ref(x, mem0, Wq, Wk, Wv, Wo, seg_len):
        B, S, Dm = x.shape
        H, Dh = (Wq.shape[1], Wq.shape[2])
        M = mem0.shape[1]
        scale = Dh ** (-0.5)
        n_seg = S // seg_len
        L = M + seg_len
        idx = torch.arange(L)
        mask = (idx[:, None] < M) | (idx[:, None] >= idx[None, :])
        mem = mem0
        outs = []
        for s in range(n_seg):
            xs = x[:, s * seg_len:(s + 1) * seg_len, :].clone()
            h = torch.concatenate([mem, xs], axis=1)
            q = torch.einsum('btd,dhe->bhte', h, Wq)
            k = torch.einsum('btd,dhe->bhte', h, Wk)
            v = torch.einsum('btd,dhe->bhte', h, Wv)
            scores = torch.einsum('bhqe,bhke->bhqk', q, k) * scale
            scores = torch.where(mask[None, None], scores, -1000000000.0)
            p = _softmax(scores, axis=-1)
            o = torch.einsum('bhqk,bhke->bhqe', p, v)
            o = torch.einsum('bhte,hed->btd', o, Wo)
            mem = o[:, :M, :].clone()
            outs.append(o[:, M:, :])
        return torch.concatenate(outs, axis=1)

    def _B_ref(x, W_gate, W_up, W_down):
        gate = torch.einsum('bsd,df->bsf', x, W_gate)
        up = torch.einsum('bsd,df->bsf', x, W_up)
        gate = gate * (lambda x, dt: x.to(dt))(gate > 0, gate.dtype)
        h = gate * up
        return torch.einsum('bsf,fd->bsd', h, W_down)
    x = A_x
    xn = _layernorm(x, axis=-1)
    s = _A_ref(xn, A_mem0, A_Wq, A_Wk, A_Wv, A_Wo, A_seg_len)
    g = _silu(_B_ref(xn, B_W_gate, B_W_up, B_W_down))
    return x + s * g
```

```python
from lib_asm import *

class G:
    vXlo, vXhi = 1, 2
    vWlo = 4
    vWhi = 8
    vDX = 12
    vDW = 16
    vT = 20
    WF = [64, 128]
    XF = [96, 160]
    sX = 8
    sW0 = 12
    sW1 = 16
    sOX = 20
    sOW0 = 21
    sOW1 = 22
    sKW = 23
    sM0X = 24
    sM0W = 25
    sLoop = 26
    sW = 27

def acc(i, j):
    b = (i*8 + j)*4
    return f'a[{b}:{b+3}]'

def setup_lane_consts(a, ldx_reg_or_imm, ldw_reg_or_imm):
    g = G
    a(f'''  v_and_b32 v20, 63, v0                 ; lane
  v_and_b32 v21, 15, v20                ; l&15
  v_lshrrev_b32 v22, 4, v20             ; g
  v_lshrrev_b32 v23, 3, v20
  v_and_b32 v23, 1, v23
  v_lshlrev_b32 v23, 1, v23
  v_xor_b32 v23, v22, v23
  v_lshlrev_b32 v23, 4, v23
  v_lshlrev_b32 v24, 6, v21
  v_add_u32 v23, v23, v24
  s_lshr_b32 s40, s{g.sW}, 1            ; wm
  s_lshl_b32 s40, s40, 13               ; wm*128*64
  v_add_u32 v{g.vXlo}, s40, v23
  v_add_u32 v{g.vXhi}, 0x10000, v{g.vXlo}
  v_and_b32 v23, 3, v20                 ; c
  v_lshrrev_b32 v24, 2, v20
  v_and_b32 v24, 3, v24                 ; r
  v_and_b32 v25, 1, v22
  v_lshlrev_b32 v25, 2, v25
  v_or_b32 v25, v25, v24                ; f
  v_lshlrev_b32 v26, 3, v22
  v_add_u32 v26, v26, v24               ; 8g+r
  v_lshlrev_b32 v26, 8, v26
  v_lshlrev_b32 v23, 3, v23
  v_add_u32 v26, v26, v23
  v_add_u32 v26, 0x4000, v26
  s_and_b32 s40, s{g.sW}, 1             ; wn
  s_lshl_b32 s40, s40, 2''')
    for jj in range(4):
        a(f'''  s_add_u32 s41, s40, {jj}
  v_xor_b32 v27, s41, v25
  v_lshlrev_b32 v27, 5, v27
  v_add_u32 v{g.vWlo+jj}, v26, v27
  v_add_u32 v{g.vWhi+jj}, 0x10000, v{g.vWlo+jj}''')
    a(f'''  v_lshrrev_b32 v23, 2, v20
  s_lshl_b32 s40, s{g.sW}, 6
  v_add_u32 v23, s40, v23               ; row (p=0)
  v_mul_lo_u32 v23, v23, {ldx_reg_or_imm}
  v_lshrrev_b32 v24, 5, v20
  v_lshlrev_b32 v24, 1, v24
  v_and_b32 v25, 3, v20
  v_xor_b32 v24, v24, v25
  v_lshlrev_b32 v24, 4, v24
  v_add_u32 v{g.vDX}, v23, v24
  s_lshl_b32 s40, {ldx_reg_or_imm}, 4''')
    for p in range(1, 4):
        a(f'  v_add_u32 v{g.vDX+p}, s40, v{g.vDX+p-1}')
    a(f'''  v_lshrrev_b32 v23, 4, v20             ; i>>4
  s_and_b32 s40, s{g.sW}, 1
  s_lshl_b32 s40, s40, 2
  v_or_b32 v24, s40, v23                ; f
  v_and_b32 v25, 15, v20
  v_lshrrev_b32 v26, 1, v25
  v_xor_b32 v26, v26, v24
  v_lshlrev_b32 v26, 5, v26
  v_and_b32 v25, 1, v25
  v_lshlrev_b32 v25, 4, v25
  v_add_u32 v26, v26, v25
  s_lshl_b32 s40, s{g.sW}, 3
  v_add_u32 v23, s40, v23
  v_mul_lo_u32 v23, v23, {ldw_reg_or_imm}
  v_add_u32 v{g.vDW}, v23, v26
  s_lshl_b32 s40, {ldw_reg_or_imm}, 2
  v_add_u32 v{g.vDW+1}, s40, v{g.vDW}
  s_lshl_b32 s{g.sM0X}, s{g.sW}, 12
  s_lshl_b32 s{g.sM0W}, s{g.sW}, 11
  s_add_u32 s{g.sM0W}, s{g.sM0W}, 0x4000
  s_lshl_b32 s{g.sKW}, {ldw_reg_or_imm}, 5''')

def dma_ops(stage):
    g = G; ops = []
    for p in range(4):
        ops.append((f's_add_u32 m0, s{g.sM0X}, {stage*32768 + p*1024}',
                    f'buffer_load_dwordx4 v{g.vDX+p}, s[{g.sX}:{g.sX+3}], s{g.sOX} offen lds'))
    for p in range(4):
        rho, hh = p & 1, p >> 1
        srd = g.sW1 if rho else g.sW0; so = g.sOW1 if rho else g.sOW0
        ops.append((f's_add_u32 m0, s{g.sM0W}, {stage*32768 + rho*8192 + hh*1024}',
                    f'buffer_load_dwordx4 v{g.vDW+hh}, s[{srd}:{srd+3}], s{so} offen lds'))
    adv = [f's_add_u32 s{g.sOX}, s{g.sOX}, 64', f's_add_u32 s{g.sOW0}, s{g.sOW0}, s{g.sKW}', f's_add_u32 s{g.sOW1}, s{g.sOW1}, s{g.sKW}']
    return ops, adv

def read_ops(stage, st):
    g = G; hi = stage >= 2; so = (stage & 1)*32768
    xa = g.vXhi if hi else g.vXlo; wa = g.vWhi if hi else g.vWlo
    W = []; X = []
    for j in range(8):
        rho, jj = j >> 2, j & 3; r = g.WF[st] + 4*j
        W.append([f'ds_read_b64_tr_b16 v[{r}:{r+1}], v{wa+jj} offset:{so + rho*8192}',
                  f'ds_read_b64_tr_b16 v[{r+2}:{r+3}], v{wa+jj} offset:{so + rho*8192 + 1024}'])
    for i in range(8):
        r = g.XF[st] + 4*i
        X.append(f'ds_read_b128 v[{r}:{r+3}], v{xa} offset:{so + i*1024}')
    out = []
    for j in range(8):
        out += W[j]
    out = out[:16]
    res = []
    for k in range(8):
        res.append(X[k]); res += [out[2*k], out[2*k+1]]
    return res

def mfma(i, j, st, swap, first=False):
    g = G
    w = f'v[{g.WF[st]+4*j}:{g.WF[st]+4*j+3}]'; x = f'v[{g.XF[st]+4*i}:{g.XF[st]+4*i+3}]'
    c = '0' if first else acc(i, j)
    return f'v_mfma_f32_16x16x32_bf16 {acc(i,j)}, {x if swap else w}, {w if swap else x}, {c}'

def step(a, s, swap, dma=True, reads=True, vm=8, first=False, sched=None):
    st = s & 1
    fill = []
    if reads: R = read_ops((s+1) & 3, st ^ 1)
    else: R = []
    D, adv = dma_ops((s+3) & 3) if dma else ([], [])
    if vm is not None: a(f'  s_waitcnt vmcnt({vm}) lgkmcnt(0)')
    else: a('  s_waitcnt lgkmcnt(0)')
    a('  s_barrier')
    slots = [[] for _ in range(64)]
    pos = 2
    for k, (m0, ld) in enumerate(D):
        p = 3 + 6*k
        slots[p-1].append(m0); slots[p].append(ld)
    for k, x in enumerate(adv): slots[50+k].append(x)
    for k, r in enumerate(R):
        slots[min(63, 2*k)].append(r)
    n = 0
    for i in range(8):
        for j in range(8):
            a('  ' + mfma(i, j, st, swap, first))
            for x in slots[n]: a('  ' + x)
            n += 1
```

```python
from util import *
from layout import *

class C:
    sWS = 4
    sRG = 8
    sT0 = 12
    sW = 28; sX = 29; sJ = 30; sS = 31
    sOA = 32; sOB = 33; sOBr = 34; sOC = 35; sOCr = 36; sSlotA = 37
    sKV = 38; sKM = 39; sBound = 40; sScale = 41; sPar = 42; sU = 43
    sSel = 44
    sMK = 46
    sT = 50
    vAld = 1; vAst = 2; vBldq = 3; vBldv = 4; vBst = 5; vCst = 6; vCld = 7
    vKt0 = 8; vKt1 = 9; vVt0 = 10; vVt1 = 11; vIdx = 12; vR1w = 13; vR1wv = 14; vR1r = 15
    vR2w = 244; vR2r = 245; vKMst = 246; vVMst = 247; vLo = 248; vHi = 249; vT = 250; vT2 = 251; vAo = 252
    vSent = 240
    vCin = 236
    vA = 16
    vQKV = 32
    vKt = 56
    vVt = 88
    vX = 120
    vVX = 136
    vOne = 144
    vPa = 148
    vPb = 150
    vR1wk = 158
    vSum = 152
    vRi = 156
    vS = 168
    vPV = 180
    vWA = 212
    vWo = 220
    vC = 16
    vP = 32
LDS_R1 = 0; R1_W = 3584; R1_K = 1280; R1_V = 2560; R1_RS = 160
LDS_R2 = 16384; R2_RS = 288; R2_W = 8*R2_RS

def emit_setup(a):
    c = C; t = c.sT
    a(f'''  ; ---- chain role scalars
  s_lshr_b32 s{t}, s{c.sJ}, 2
  s_and_b32 s{t+1}, s{c.sJ}, 3           ; es
  s_lshr_b32 s{t+2}, s{c.sJ}, 4          ; j>>4
  s_and_b32 s{c.sU}, s{c.sJ}, 15         ; u
  s_lshl_b32 s{t+3}, s{t+2}, 2
  s_add_u32 s{t+3}, s{t+3}, s{c.sW}
  s_lshl_b32 s{t+4}, s{c.sX}, 3
  s_add_u32 s{t+5}, s{t+4}, s{t+3}       ; h_att
  s_add_u32 s{t+4}, s{t+4}, s{t}         ; h (qkv)
  s_lshl_b32 s{t+6}, s{c.sX}, 1
  s_add_u32 s{t+6}, s{t+6}, s{t+2}       ; sg''')
    hl, es, jh, hla, h, ha, sg = [f's{t+i}' for i in range(7)]
    T = t + 8
    a(f'  s_lshl_b32 s{T}, s{c.sW}, 12')
    lanesum(a, f'v{c.vAld}', [(5,1,9),(2,2,7),(0,1,6),(4,1,5),(1,1,4)], 0, [f's{T}'])
    a(f'''  s_lshl_b32 s{T}, s{c.sX}, 14
  s_lshl_b32 s{T+1}, s{c.sJ}, 9
  s_add_u32 s{T}, s{T}, s{T+1}
  s_lshl_b32 s{T+1}, s{c.sW}, 7
  s_add_u32 s{T}, s{T}, s{T+1}''')
    lanesum(a, f'v{c.vAst}', [(4,1,6),(0,4,2),(5,1,17)], RA, [f's{T}'])
    a(f'''  s_lshl_b32 s{T}, s{c.sX}, 16
  s_mul_i32 s{T+1}, {hla}, 6144
  s_add_u32 s{T}, s{T}, s{T+1}''')
    lanesum(a, f'v{c.vBldq}', [(1,1,11),(2,2,7),(0,1,6),(4,2,4)], 0, [f's{T}'])
    lanesum(a, f'v{c.vBldv}', [(0,6,3)], 4096, [f's{T}'])
    a(f'''  s_lshl_b32 s{T}, s{c.sX}, 16
  s_mul_i32 s{T+1}, {hl}, 6144
  s_add_u32 s{T}, s{T}, s{T+1}
  s_lshl_b32 s{T+1}, s{c.sW}, 11
  s_add_u32 s{T}, s{T}, s{T+1}
  s_lshl_b32 s{T+1}, {es}, 9
  s_add_u32 s{T}, s{T}, s{T+1}''')
    lanesum(a, f'v{c.vBst}', [(0,6,3)], 0, [f's{T}'])
    a(f'''  s_lshl_b32 s{T}, s{c.sU}, 15
  s_lshl_b32 s{T+1}, s{c.sPar}, 13
  s_add_u32 s{T}, s{T}, s{T+1}
  s_lshl_b32 s{T+1}, {sg}, 10
  s_add_u32 s{T}, s{T}, s{T+1}
  s_and_b32 s{T+1}, s{c.sW}, 1
  s_lshl_b32 s{T+1}, s{T+1}, 9
  s_add_u32 s{T}, s{T}, s{T+1}''')
    lanesum(a, f'v{c.vCst}', [(3,1,14),(4,2,7),(0,3,4)], 0, [f's{T}'])
    a(f'''  s_lshl_b32 s{T}, s{c.sJ}, 14
  s_lshl_b32 s{T+1}, s{c.sPar}, 13
  s_add_u32 s{T}, s{T}, s{T+1}
  s_lshl_b32 s{T+1}, s{c.sW}, 8
  s_add_u32 s{T}, s{T}, s{T+1}''')
    lanesum(a, f'v{c.vCld}', [(5,1,12),(4,1,7),(0,4,3)], 0, [f's{T}'])
    a(f'  s_lshl_b32 s{T}, {ha}, 13')
    lanesum(a, f'v{c.vKt0}', [(0,6,4)], K, [f's{T}'])
    a(f'  v_add_u32 v{c.vKt1}, 4096, v{c.vKt0}')
    lanesum(a, f'v{c.vVt0}', [(0,6,4)], VT, [f's{T}'])
    a(f'  v_add_u32 v{c.vVt1}, 4096, v{c.vVt0}')
    a(f'  s_lshl_b32 s{T}, {ha}, 11')
    lanesum(a, f'v{c.vKMst}', [(2,2,7),(0,1,6),(4,2,4)], KM, [f's{T}'])
    lanesum(a, f'v{c.vVMst}', [(0,6,3)], VM, [f's{T}'])
    a(f'  s_mul_i32 s{T}, s{c.sW}, {R1_W}')
    lanesum(a, f'v{c.vR1w}', [(4,2,8),(4,2,6),(0,4,2)], LDS_R1, [f's{T}'])
    a(f'  v_add_u32 v{c.vR1wk}, {R1_K}, v{c.vR1w}')
    lanesum(a, f'v{c.vR1wv}', [(0,6,4)], LDS_R1 + R1_V, [f's{T}'])
    a(f'  s_mul_i32 s{T}, s{c.sW}, {R1_K}')
    lanesum(a, f'v{c.vR1r}', [(3,3,7),(3,3,5),(0,3,4)], LDS_R1, [f's{T}'])
    lanesum(a, f'v{c.vT}', [(0,6,4)], LDS_R1 + R1_V)
    a(f'''  s_cmp_eq_u32 s{c.sW}, 2
  s_cselect_b64 vcc, -1, 0
  v_cndmask_b32 v{c.vR1r}, v{c.vR1r}, v{c.vT}, vcc''')
    a(f'  s_mul_i32 s{T}, s{c.sW}, {R2_W}')
    lanesum(a, f'v{c.vR2w}', [(4,2,9),(4,2,6),(0,4,2)], LDS_R2, [f's{T}'])
    a(f'''  s_and_b32 s{T}, s{c.sW}, 1
  s_mul_i32 s{T}, s{T}, {4*R2_RS}''')
    lanesum(a, f'v{c.vR2r}', [(4,2,8),(4,2,5),(0,4,4)], LDS_R2, [f's{T}'])
    a(f'''  v_bfe_u32 v{c.vT}, v0, 1, 1
  v_cmp_eq_u32 vcc, 1, v{c.vT}
  v_mov_b32 v{c.vIdx}, 0x44444444
  v_mov_b32 v{c.vT}, 0xeeeeeeee
  s_nop 1
  v_cndmask_b32 v{c.vIdx}, v{c.vIdx}, v{c.vT}, vcc
  v_cmp_le_u32 vcc, 32, v0
  v_mov_b32 v{c.vT2}, -1
  v_mov_b32 v{c.vT}, 0
  v_mov_b32 v{c.vPa+1}, 0
  v_mov_b32 v{c.vPb}, 0
  s_nop 1''')
    for i in range(4):
        a(f'  v_mov_b32 v{c.vSent+i}, -1')
        a(f'  v_mov_b32 v{c.vOne+i}, 0x3f803f80')
    a(f'''  v_cndmask_b32 v{c.vLo}, v{c.vT}, v{c.vT2}, vcc
  v_mov_b32 v{c.vHi}, 0xfffffffe
  v_cndmask_b32 v{c.vHi}, v{c.vHi}, v{c.vT2}, vcc
  s_mov_b32 s{c.sScale}, 0x3e0293ee      ; 128^-0.5 * log2(e)
  s_mov_b32 s{c.sMK}, 0xcccccccc
  s_mov_b32 s{c.sMK+1}, 0xcccccccc
  s_mov_b32 s{c.sSel}, 0x33333333
  s_mov_b32 s{c.sSel+1}, 0x33333333''')

def emit_weights(a):
    c = C; t = c.sT
    sq, sk, sv, so = c.sT0, c.sT0+4, c.sT0+8, c.sT0+12
    vD, vDo, vRq, vRo = 16, 17, 18, 19
    a(f'''  ; ---- resident weights
  s_lshr_b32 s{t}, s{c.sJ}, 2
  s_lshl_b32 s{t+1}, s{c.sX}, 3
  s_add_u32 s{t}, s{t}, s{t+1}           ; h
  s_lshl_b32 s{t}, s{t}, 8
  s_and_b32 s{t+1}, s{c.sJ}, 3
  s_lshl_b32 s{t+1}, s{t+1}, 6
  s_add_u32 s{t}, s{t}, s{t+1}           ; h*256 + es*64
  s_lshl_b32 s{t+1}, s{c.sW}, 21         ; 256w rows * 8192
  s_add_u32 s{t}, s{t}, s{t+1}''')
    lanesum(a, f'v{vD}', [(2,4,13),(0,2,4)], 0, [f's{t}'])
    a(f'''  s_lshr_b32 s{t}, s{c.sJ}, 4
  s_lshl_b32 s{t}, s{t}, 2
  s_add_u32 s{t}, s{t}, s{c.sW}
  s_lshl_b32 s{t+1}, s{c.sX}, 3
  s_add_u32 s{t}, s{t}, s{t+1}           ; h_att
  s_lshl_b32 s{t}, s{t}, 18              ; *128*2048
  s_and_b32 s{t+1}, s{c.sJ}, 15
  s_lshl_b32 s{t+1}, s{t+1}, 7
  s_add_u32 s{t}, s{t}, s{t+1}''')
    lanesum(a, f'v{vDo}', [(3,3,11),(0,3,4)], 0, [f's{t}'])
    a(f'  s_lshl_b32 s{t+2}, s{c.sW}, 15')
    lanesum(a, f'v{vRq}', [(5,1,10),(4,1,8),(2,1,6),(3,1,9),(0,2,3)], 0, [f's{t+2}'])
    lanesum(a, f'v{vRo}', [(4,1,11),(5,1,9),(2,1,7),(3,1,12),(0,2,3)], 16384, [f's{t+2}'])
    def dma(srdr, voff, ldsoff, stride):
        a(f'  s_add_u32 s{t+3}, s{t+2}, {ldsoff}\n  s_mov_b32 s{t+4}, 0')
        for i in range(16):
            a(f'''  s_mov_b32 m0, s{t+3}
  s_add_u32 s{t+3}, s{t+3}, 1024
  buffer_load_dwordx4 v{voff}, s[{srdr}:{srdr+3}], s{t+4} offen lds
  s_add_u32 s{t+4}, s{t+4}, {stride}''')
    def rd_qkv(mat, ldsoff):
        for tt in range(2):
            for b in range(4):
                for ip in range(4):
                    r = ((2*mat + tt)*4 + b)*8 + 2*ip
                    off = ldsoff + (64*b + 32*(ip >> 1) + 2*(ip & 1))*64 + tt*32
                    a(f'  ds_read_b64_tr_b16 a[{r}:{r+1}], v{vRq} offset:{off}')
    dma(sq, vD, 0, 131072); dma(sk, vD, 16384, 131072)
    a('  s_waitcnt vmcnt(16)'); rd_qkv(0, 0)
    a('  s_waitcnt vmcnt(0)'); rd_qkv(1, 16384)
    a('  s_waitcnt lgkmcnt(0)')
    dma(sv, vD, 0, 131072); dma(so, vDo, 16384, 16384)
    a('  s_waitcnt vmcnt(16)'); rd_qkv(2, 0)
    a('  s_waitcnt vmcnt(0)')
    for tl in range(4):
        for b in range(2):
            for ip in range(4):
                r = 192 + (tl*2 + b)*8 + 2*ip
                off = (64*b + 8*(ip >> 1) + 2*(ip & 1))*128 + 32*tl
                a(f'  ds_read_b64_tr_b16 a[{r}:{r+1}], v{vRo} offset:{off}')
    a('  s_waitcnt lgkmcnt(0)\n  s_barrier')

def kt_loads():
    c = C; L = []
    for tt in range(2):
        for ks in range(4):
            r = c.vKt + (tt*4 + ks)*4
            L.append(f'buffer_load_dwordx4 {vr(r,4)}, v{c.vKt0+tt}, s[{c.sWS}:{c.sWS+3}], s{c.sKV} offen offset:{ks*1024}')
    return L
def vt_loads(sreg):
    c = C; L = []
    for tau in range(8):
        r = c.vVt + tau*4
        L.append(f'buffer_load_dwordx4 {vr(r,4)}, v{c.vVt0 + (tau >> 2)}, s[{c.sWS}:{c.sWS+3}], s{sreg} offen offset:{(tau & 3)*1024}')
    return L

def km_store(a, sc, lab):
    c = C
    a(f'  s_cmp_ge_u32 s{c.sU}, 8\n  s_cbranch_scc1 {lab}_done')
    for p in range(8):
        a(f'  s_cmp_eq_u32 s{c.sU}, {p}\n  s_cbranch_scc0 {lab}_n{p}')
        if p < 4:
            a(f'''  s_mov_b64 exec, s[{c.sMK}:{c.sMK+1}]
  buffer_store_dwordx4 {vr(c.vX+4*p,4)}, v{c.vKMst}, s[{c.sWS}:{c.sWS+3}], s{c.sKM} offen offset:{p*512}{sc}''')
        else:
            es = p - 4
            a(f'  buffer_store_dwordx2 {vr(c.vVX+2*es,2)}, v{c.vVMst}, s[{c.sWS}:{c.sWS+3}], s{c.sKM} offen offset:{es*512}{sc}')
        a(f'  s_mov_b64 exec, -1\n  s_branch {lab}_done\n{lab}_n{p}:')
    a(f'{lab}_done:')

def poll(a, lab, loads, regs, fail, bound):
    c = C
    a(f'  s_mov_b32 s{c.sBound}, {bound}\n{lab}:')
    for l in loads: a('  ' + l)
    a('  s_waitcnt vmcnt(0)')
    umax_chain(a, c.vT, regs)
    a(f'''  v_cmp_eq_u32 vcc, -1, v{c.vT}
  s_cbranch_vccz {lab}_ok
  s_sub_u32 s{c.sBound}, s{c.sBound}, 1
  s_cbranch_scc0 {lab}
  s_branch {fail}
{lab}_ok:''')

def emit_loop(a, mode, pfx, fail, done, bound=200000, stamp=None):
    c = C; sc = ' sc1' if mode == 'G' else ''
    RG = f's[{c.sRG}:{c.sRG+3}]'
    L = lambda n: f'{pfx}_{n}'
    st = (lambda k: stamp(a, k)) if stamp else (lambda k: None)
    a(f'{L("step")}:')
    a(f'''  s_and_b32 s{c.sT}, s{c.sS}, 3
  s_lshl_b32 s{c.sOA}, s{c.sT}, 16
  s_lshl_b32 s{c.sT+1}, s{c.sX}, 14
  s_add_u32 s{c.sOA}, s{c.sOA}, s{c.sT+1}
  s_add_u32 s{c.sOA}, s{c.sOA}, {RA}
  s_lshl_b32 s{c.sOB}, s{c.sT}, 18
  s_xor_b32 s{c.sOBr}, s{c.sOB}, {2 << 18}
  s_add_u32 s{c.sOB}, s{c.sOB}, {RB}
  s_add_u32 s{c.sOBr}, s{c.sOBr}, {RB}
  s_lshl_b32 s{c.sOC}, s{c.sT}, 19
  s_xor_b32 s{c.sOCr}, s{c.sOC}, {2 << 19}
  s_add_u32 s{c.sT}, s{c.sS}, 1
  s_and_b32 s{c.sT}, s{c.sT}, 3
  s_lshl_b32 s{c.sSlotA}, s{c.sT}, 16
  s_lshl_b32 s{c.sKV}, s{c.sS}, 18
  s_lshl_b32 s{c.sKM}, s{c.sS}, 16
  v_xor_b32 v{c.vAo}, s{c.sSlotA}, v{c.vAst}''')
    for i in range(24): a(f'  v_mov_b32 v{c.vQKV+i}, 0')
    for i in range(16): a(f'  v_mov_b32 v{c.vWo+i}, 0')
    st(0)
    loads = [f'buffer_load_dwordx4 {vr(c.vA+4*b,4)}, v{c.vAld}, {RG}, s{c.sOA} offen offset:{b*1024} sc1' for b in range(4)]
    delay(a, OPT['preA'])
    poll(a, L('pa'), loads, range(c.vA, c.vA+16), fail, bound)
    st(1)
    if HOOK.get('after_a'): HOOK['after_a'](a, pfx)
    kl = kt_loads() if not OPT['nokv'] else []
    def qpost(p):
        d0 = c.vQKV + 8*p; d1 = d0 + 4; o = []
        if p < 2:
            o.append(f'v_pk_add_f32 {vr(d0,2)}, {vr(d0,2)}, {vr(d0+2,2)}')
            o.append(f'v_pk_add_f32 {vr(d1,2)}, {vr(d1,2)}, {vr(d1+2,2)}')
            ad = c.vR1w if p == 0 else c.vR1wk
            for i in range(2): o.append(f'ds_write2_b32 v{ad}, v{d0+i}, v{d1+i} offset0:{i*R1_RS//4} offset1:{i*R1_RS//4 + 16}')
        else:
            o.append(f'v_pk_add_f32 {vr(d0,2)}, {vr(d0,2)}, {vr(d0+2,2)}')
            o.append(f'v_pk_add_f32 {vr(d0+2,2)}, {vr(d1,2)}, {vr(d1+2,2)}')
            o.append(f'ds_write_b128 v{c.vR1wv}, {vr(d0,4)}')
        return o
    for p in range(3):
        if p == 0: side = [[x] for x in kl] + [[]]*8
        else:
            q = qpost(p-1)
            side = [[], [], [], [], [q[0]], [q[1]], [q[2]], [q[3]]]
        n = 0
        for b in range(4):
            for t in (2*p, 2*p+1):
                w = (t*4 + b)*8
                a(f'  v_smfmac_f32_16x16x64_bf16 {vr(c.vQKV+4*t,4)}, {vr(c.vA+4*b,4)}, {ar(w,8)}, v{c.vIdx}')
                if p > 0 and n == 3: a('  s_nop 3')
                for x in (side[n] if n < len(side) else []): a('  ' + x)
                n += 1
    a('  s_nop 7')
    for x in qpost(2): a('  ' + x)
    if HOOK.get('pre_red1'): HOOK['pre_red1'](a, pfx, fail)
    a('  s_waitcnt lgkmcnt(0)\n  s_barrier')
    st(2)
    a(f'  s_cmp_eq_u32 s{c.sW}, 3\n  s_cbranch_scc1 {L("nob")}')
    for w in range(4): a(f'  ds_read_b128 {vr(c.vA+4*w,4)}, v{c.vR1r} offset:{w*R1_W}')
    a('  s_waitcnt lgkmcnt(2)')
    a(f'  v_pk_add_f32 {vr(c.vA,2)}, {vr(c.vA,2)}, {vr(c.vA+4,2)}\n  v_pk_add_f32 {vr(c.vA+2,2)}, {vr(c.vA+2,2)}, {vr(c.vA+6,2)}')
    a('  s_waitcnt lgkmcnt(0)')
    a(f'  v_pk_add_f32 {vr(c.vA+8,2)}, {vr(c.vA+8,2)}, {vr(c.vA+12,2)}\n  v_pk_add_f32 {vr(c.vA+10,2)}, {vr(c.vA+10,2)}, {vr(c.vA+14,2)}')
    a(f'  v_pk_add_f32 {vr(c.vA,2)}, {vr(c.vA,2)}, {vr(c.vA+8,2)}\n  v_pk_add_f32 {vr(c.vA+2,2)}, {vr(c.vA+2,2)}, {vr(c.vA+10,2)}')
    a(f'''  v_cvt_pk_bf16_f32 v{c.vA+4}, v{c.vA}, v{c.vA+1}
  v_cvt_pk_bf16_f32 v{c.vA+5}, v{c.vA+2}, v{c.vA+3}
  buffer_store_dwordx2 {vr(c.vA+4,2)}, v{c.vBst}, {RG}, s{c.sOB} offen{sc}
  buffer_store_dwordx2 {vr(c.vSent,2)}, v{c.vBst}, {RG}, s{c.sOBr} offen{sc}
{L("nob")}:''')
    st(3)
    loads = []
    for es in range(4): loads.append(f'buffer_load_dwordx4 {vr(c.vX+4*es,4)}, v{c.vBldq}, {RG}, s{c.sOB} offen offset:{es*512} sc1')
    for es in range(4): loads.append(f'buffer_load_dwordx2 {vr(c.vVX+2*es,2)}, v{c.vBldv}, {RG}, s{c.sOB} offen offset:{es*512} sc1')
    delay(a, OPT['preB'])
    poll(a, L('pb'), loads, range(c.vX, c.vX+24), fail, bound)
    st(4)
    a(f'  s_cmp_eq_u32 s{c.sS}, 63\n  s_cbranch_scc1 {L("last")}')
    S0, S1, S2 = c.vS, c.vS+4, c.vS+8
    for ks in range(4):
        q = vr(c.vX+4*ks, 4)
        a(f'  v_mfma_f32_16x16x32_bf16 {vr(S2,4)}, {q}, {q}, {0 if ks == 0 else vr(S2,4)}')
        a(f'  v_mfma_f32_16x16x32_bf16 {vr(S0,4)}, {vr(c.vKt+4*ks,4)}, {q}, {0 if ks == 0 else vr(S0,4)}')
        a(f'  v_mfma_f32_16x16x32_bf16 {vr(S1,4)}, {vr(c.vKt+16+4*ks,4)}, {q}, {0 if ks == 0 else vr(S1,4)}')
    T, T2 = c.vT, c.vT2
    P = c.vP
    a(f'''  s_mov_b64 vcc, s[{c.sSel}:{c.sSel+1}]
  s_nop 5
  v_max3_f32 v{T}, v{S2+2}, v{S2+3}, v{S0}
  v_max3_f32 v{T}, v{T}, v{S0+1}, v{S0+2}
  v_max3_f32 v{T}, v{T}, v{S0+3}, v{S1}
  v_max3_f32 v{T}, v{T}, v{S1+1}, v{S1+2}
  v_max_f32 v{T}, v{T}, v{S1+3}
  v_mov_b32 v{T2}, v{T}
  s_nop 1
  v_permlane32_swap_b32 v{T}, v{T2}
  v_max_f32 v{T}, v{T}, v{T2}
  v_mov_b32 v{T2}, v{T}
  s_nop 1
  v_permlane16_swap_b32 v{T}, v{T2}
  v_max_f32 v{T}, v{T}, v{T2}
  v_mul_f32 v{T}, s{c.sScale}, v{T}
  v_fma_f32 v{S2+2}, v{S2+2}, s{c.sScale}, -v{T}
  v_fma_f32 v{S2+3}, v{S2+3}, s{c.sScale}, -v{T}
  v_exp_f32 v{S2+2}, v{S2+2}
  v_exp_f32 v{S2+3}, v{S2+3}
  v_fma_f32 v{S0}, v{S0}, s{c.sScale}, -v{T}
  v_cvt_pk_bf16_f32 v{c.vPa}, v{S2+2}, v{S2+3}
  v_cvt_pk_bf16_f32 v{c.vPb+1}, v{S2+2}, v{S2+3}
  v_fma_f32 v{S0+1}, v{S0+1}, s{c.sScale}, -v{T}
  v_fma_f32 v{S0+2}, v{S0+2}, s{c.sScale}, -v{T}''')
    side = [f'v_fma_f32 v{S0+i}, v{S0+i}, s{c.sScale}, -v{T}' for i in range(3, 8)]
    side += [f'v_exp_f32 v{S0+i}, v{S0+i}' for i in range(8)]
    side += ['s_nop 0'] + [f'v_cvt_pk_bf16_f32 v{P+i}, v{S0+2*i}, v{S0+2*i+1}' for i in range(4)]
    def x16(tau):
        es, tp = tau >> 1, tau & 1
        return f'v_mfma_f32_16x16x16_bf16 {vr(c.vPV+4*tau,4)}, {vr(c.vVX+2*es,2)}, {vr(c.vPb if tp else c.vPa,2)}, 0'
    k = 0
    a(f'  v_mfma_f32_16x16x16_bf16 {vr(c.vSum,4)}, {vr(c.vOne,2)}, {vr(c.vPa,2)}, 0')
    for tau in range(8):
        a('  ' + x16(tau))
        m = [2, 2, 1, 1, 1, 1, 1, 1][tau]
        for x in side[k:k+m]: a('  ' + x)
        k += m
    for x in side[k:]: a('  ' + x)
    a('  s_nop 1')
    def x32(tau): return f'v_mfma_f32_16x16x32_bf16 {vr(c.vPV+4*tau,4)}, {vr(c.vVt+4*tau,4)}, {vr(P,4)}, {vr(c.vPV+4*tau,4)}'
    def post(b):
        ops = []
        base = c.vPV + 16*b
        for i in range(8):
            ops.append(f'v_cndmask_b32_dpp v{base+i}, v{base+8+i}, v{base+i}, vcc quad_perm:[0,1,0,1] row_mask:0xf bank_mask:0xf')
        for i in range(4):
            ops.append(f'v_pk_mul_f32 {vr(base+2*i,2)}, {vr(base+2*i,2)}, {vr(c.vRi,2)}')
        for i in range(4):
            ops.append(f'v_cvt_pk_bf16_f32 v{c.vWA+4*b+i}, v{base+2*i}, v{base+2*i+1}')
        return ops
    a(f'  v_mfma_f32_16x16x32_bf16 {vr(c.vSum,4)}, {vr(c.vOne,4)}, {vr(P,4)}, {vr(c.vSum,4)}')
    for tau in range(4): a('  ' + x32(tau))
    a(f'  s_nop 3\n  v_rcp_f32 v{c.vRi}, v{c.vSum}')
    a('  ' + x32(4))
    a('  s_nop 0')
    a('  ' + x32(5))
    a(f'  v_mov_b32_dpp v{c.vRi}, v{c.vRi} quad_perm:[0,1,0,1] row_mask:0xf bank_mask:0xf')
    p0 = post(0)
    a('  ' + x32(6))
    a(f'  v_mov_b32 v{c.vRi+1}, v{c.vRi}')
    for x in p0[0:1]: a('  ' + x)
    a('  ' + x32(7))
    for x in p0[1:]: a('  ' + x)
    a(f'  s_add_u32 s{c.sT}, s{c.sKV}, {1 << 18}')
    vl = vt_loads(c.sT) if not OPT['nokv'] else ['s_nop 0']*8
    a('  s_nop 0')
    p1 = post(1)
    for t in range(4):
        a(f'  v_smfmac_f32_16x16x64_bf16 {vr(c.vWo+4*t,4)}, {vr(c.vWA,4)}, {ar(192+(t*2)*8,8)}, v{c.vIdx}')
        for x in p1[4*t:4*t+4]: a('  ' + x)
    a('  s_nop 1')
    for t in range(4):
        a(f'  v_smfmac_f32_16x16x64_bf16 {vr(c.vWo+4*t,4)}, {vr(c.vWA+4,4)}, {ar(192+(t*2+1)*8,8)}, v{c.vIdx}')
        a('  ' + vl[2*t]); a('  ' + vl[2*t+1])
    for t in range(4):
        d0 = c.vWo + 4*t
        if t == 0: a('  s_nop 0')
        if t == 3: a('  s_nop 1')
        a(f'  v_pk_add_f32 {vr(d0,2)}, {vr(d0,2)}, {vr(d0+2,2)}')
        a(f'  ds_write2_b32 v{c.vR2w}, v{d0}, v{d0+1} offset0:{16*t} offset1:{16*t + R2_RS//4}')
    a('  s_waitcnt lgkmcnt(0)\n  s_barrier')
    st(5)
    a(f'  s_cmp_ge_u32 s{c.sW}, 2\n  s_cbranch_scc1 {L("noc")}')
    Z = c.vA
    for w in range(4): a(f'  ds_read_b128 {vr(Z+4*w,4)}, v{c.vR2r} offset:{w*R2_W}')
    a('  s_waitcnt lgkmcnt(2)')
    a(f'  v_pk_add_f32 {vr(Z,2)}, {vr(Z,2)}, {vr(Z+4,2)}\n  v_pk_add_f32 {vr(Z+2,2)}, {vr(Z+2,2)}, {vr(Z+6,2)}')
    a('  s_waitcnt lgkmcnt(0)')
    a(f'  v_pk_add_f32 {vr(Z+8,2)}, {vr(Z+8,2)}, {vr(Z+12,2)}\n  v_pk_add_f32 {vr(Z+10,2)}, {vr(Z+10,2)}, {vr(Z+14,2)}')
    a(f'  v_pk_add_f32 {vr(Z,2)}, {vr(Z,2)}, {vr(Z+8,2)}\n  v_pk_add_f32 {vr(Z+2,2)}, {vr(Z+2,2)}, {vr(Z+10,2)}')
    a(f'''  buffer_store_dwordx4 {vr(Z,4)}, v{c.vCst}, {RG}, s{c.sOC} offen sc1
  buffer_store_dwordx4 {vr(c.vSent,4)}, v{c.vCst}, {RG}, s{c.sOCr} offen sc1
{L("noc")}:''')
    if not OPT['nokm']: km_store(a, sc if mode == 'G' else KM_SC, L('km'))
    st(6)
    Y = c.vC
    loads = [f'buffer_load_dwordx2 {vr(Y+2*i,2)}, v{c.vCld}, {RG}, s{c.sOC} offen offset:{i*1024} sc1' for i in range(4)]
    delay(a, OPT['preC'])
    poll(a, L('pc'), loads, range(Y, Y+8), fail, bound)
    st(7)
    a(f'''  v_pk_add_f32 {vr(Y,2)}, {vr(Y,2)}, {vr(Y+2,2)}
  v_pk_add_f32 {vr(Y+4,2)}, {vr(Y+4,2)}, {vr(Y+6,2)}
  v_pk_add_f32 {vr(Y,2)}, {vr(Y,2)}, {vr(Y+4,2)}
  s_nop 1
  v_permlane32_swap_b32 v{Y}, v{Y+1}
  v_add_f32 v{Y}, v{Y}, v{Y+1}
  v_mov_b32 v{Y+1}, v{Y}
  s_nop 1
  v_permlane32_swap_b32 v{Y}, v{Y+1}
  v_cvt_pk_bf16_f32 v{Y}, v{Y}, v{Y+1}
  v_med3_u32 v{Y}, v{Y}, v{c.vLo}, v{c.vHi}
  buffer_store_dword v{Y}, v{c.vAo}, {RG}, 0 offen{sc}
  s_add_u32 s{c.sS}, s{c.sS}, 1
  s_branch {L("step")}
{L("last")}:''')
    km_store(a, sc if mode == 'G' else KM_SC, L('kml'))
    a(f'  s_branch {done}')

KM_SC = ' sc1'
HOOK = {}
OPT = dict(nokv=0, preA=0, preB=0, preC=0, nokm=0, warm=0)
def delay(a, n):
    k = n // 4
    while k > 0:
        m = min(k, 16); a(f'  s_nop {m-1}'); k -= m


def emit_start(a, mode, smem0):
    c = C; sc = ' sc1' if mode == 'G' else ''
    a(f'''  s_lshl_b32 s{c.sT}, s{c.sJ}, 6
  s_lshl_b32 s{c.sT+1}, s{c.sW}, 12
  s_add_u32 s{c.sT}, s{c.sT}, s{c.sT+1}''')
    lanesum(a, f'v{c.vT2}', [(4,1,11),(0,4,2)], 0, [f's{c.sT}'])
    a(f'''  buffer_load_dword v16, v{c.vT2}, s[{smem0}:{smem0+3}], 0 offen
  s_mov_b32 s{c.sS}, 0
  s_mov_b32 s{c.sT}, 0
  s_waitcnt vmcnt(0)
  v_med3_u32 v16, v16, v{c.vLo}, v{c.vHi}
  buffer_store_dword v16, v{c.vAst}, s[{c.sRG}:{c.sRG+3}], 0 offen{sc}''')
    for l in vt_loads(c.sT): a('  ' + l)
```

```python
MB = 1 << 20
WS_BYTES = 256*MB
XN = 0
G  = 4*MB
Q  = 8*MB
K  = 24*MB
VT = 40*MB
O  = 56*MB
H  = 72*MB
KM = 88*MB
VM = 92*MB
RING = 96*MB
WOF = 104*MB
FLG = 112*MB
R = 4
RC = 0
RB = 2*MB
RA = 3*MB
RING_BYTES = RA + R*65536
A_X, A_MEM0, A_WQ, A_WK, A_WV, A_WO, A_SEG, B_X, B_WG, B_WU, B_WD, D_OUT, D_DBG, D_WS = [8*i for i in range(14)]
DBG_XCD = 0
DBG_GT = 32
DBG_ARR = 36
DBG_FAIL = 40
```

```python
from util import *
from layout import *

def emit_roles(a, sDbg, sW, sXcc, sTk, sGt, sLocal, fail, nwg=256, bound=400000, pre_arrive=None):
    a(f'''  s_getreg_b32 s{sXcc}, hwreg(HW_REG_XCC_ID)
  s_and_b32 s{sXcc}, s{sXcc}, 7
  s_cmp_lg_u32 s{sW}, 0
  s_cbranch_scc1 L_role_w
  s_lshl_b32 s50, s{sXcc}, 2
  v_mov_b32 v1, s50
  v_mov_b32 v2, 1
  v_mov_b32 v3, {DBG_GT}
  v_mov_b32 v4, {DBG_ARR}
  s_mov_b64 exec, 1
  global_atomic_add v12, v1, v2, s[{sDbg}:{sDbg+1}] sc0 sc1
  global_atomic_add v13, v3, v2, s[{sDbg}:{sDbg+1}] sc0 sc1
  s_mov_b64 exec, -1''')
    if pre_arrive: pre_arrive(a)
    a(f'''  s_waitcnt vmcnt(0)
  s_mov_b64 exec, 1
  global_atomic_add v4, v2, s[{sDbg}:{sDbg+1}] sc1
  s_mov_b32 s51, {bound}
L_role_poll:
  global_load_dword v7, v4, s[{sDbg}:{sDbg+1}] sc1
  s_waitcnt vmcnt(0)
  v_readfirstlane_b32 s52, v7
  s_cmp_ge_u32 s52, {nwg}
  s_cbranch_scc1 L_role_ok
  s_sub_u32 s51, s51, 1
  s_cbranch_scc0 L_role_poll
  v_mov_b32 v12, -1
  v_mov_b32 v13, -1
  v_mov_b32 v8, 0
  v_mov_b32 v9, 0
  v_mov_b32 v10, 0
  v_mov_b32 v11, 0
  s_branch L_role_pub
L_role_ok:
  v_mov_b32 v1, 0
  global_load_dwordx4 v[8:11], v1, s[{sDbg}:{sDbg+1}] sc1
  s_waitcnt vmcnt(0)
L_role_pub:
  v_min_u32 v8, v8, v9
  v_min_u32 v10, v10, v11
  v_min_u32 v7, v8, v10
  v_mov_b32 v1, 0
  ds_write_b64 v1, v[12:13]
  ds_write_b32 v1, v7 offset:8
  s_waitcnt lgkmcnt(0)
  s_mov_b64 exec, -1
L_role_w:
  s_barrier
  v_mov_b32 v1, 0
  ds_read_b64 v[2:3], v1
  ds_read_b32 v4, v1 offset:8
  s_waitcnt lgkmcnt(0)
  v_readfirstlane_b32 s{sTk}, v2
  v_readfirstlane_b32 s{sGt}, v3
  v_readfirstlane_b32 s52, v4
  s_barrier
  s_cmp_eq_u32 s{sGt}, -1
  s_cbranch_scc1 {fail}
  s_cmp_ge_u32 s52, 32
  s_cselect_b32 s{sLocal}, 1, 0''')
```

```python
from util import *
from layout import *
import gemmlib
from gemmlib import G as GM, setup_lane_consts, dma_ops, read_ops, step

class T:
    sWS = 4
    sW = 27
    sM = 28; sN = 29; sTy = 30; sNL = 31
    sLdx = 33; sLdw = 34
    sOut = 36
    sP = 52

def load_ptr(a, sreg, off):
    a(f'  s_load_dwordx2 s[{sreg}:{sreg+1}], s[0:1], {off}')

def emit_ws_srd(a):
    a(f'  s_load_dwordx2 s[50:51], s[0:1], {D_WS}\n  s_waitcnt lgkmcnt(0)')
    srd(a, T.sWS, 's50', 's51', WS_BYTES)

def emit_ln(a, sId, sc=''):
    load_ptr(a, 52, A_X)
    a(f'''  s_lshl_b32 s40, s{sId}, 3
  s_lshl_b32 s41, s{T.sW}, 1
  s_add_u32 s40, s40, s41
  s_lshl_b32 s40, s40, 11
  v_lshlrev_b32 v1, 4, v0
  s_waitcnt lgkmcnt(0)''')
    srd(a, 8, 's52', 's53', 2048*1024*2)
    for r in range(2):
        for h in range(2):
            a(f'  buffer_load_dwordx4 {vr(4 + 8*r + 4*h, 4)}, v1, s[8:11], s40 offen offset:{r*2048 + h*1024}')
    for r in range(2):
        a(f'  s_waitcnt vmcnt({2 - 2*r})')
        src = 4 + 8*r; f = 24 + 16*r
        for i in range(8):
            a(f'  v_lshlrev_b32 v{f+2*i}, 16, v{src+i}')
            a(f'  v_and_b32 v{f+2*i+1}, 0xffff0000, v{src+i}')
    def wave_sum(reg, tmp):
        for ctrl in ('quad_perm:[1,0,3,2]', 'quad_perm:[2,3,0,1]', 'row_half_mirror', 'row_mirror'):
            a(f'  s_nop 1\n  v_add_f32_dpp v{reg}, v{reg}, v{reg} {ctrl} row_mask:0xf bank_mask:0xf')
        a(f'''  v_mov_b32 v{tmp}, v{reg}
  s_nop 1
  v_permlane16_swap_b32 v{reg}, v{tmp}
  v_add_f32 v{reg}, v{reg}, v{tmp}
  v_mov_b32 v{tmp}, v{reg}
  s_nop 1
  v_permlane32_swap_b32 v{reg}, v{tmp}
  v_add_f32 v{reg}, v{reg}, v{tmp}''')
    for r in range(2):
        f = 24 + 16*r; s = 56 + r
        a(f'  v_add_f32 v{s}, v{f}, v{f+1}')
        for i in range(2, 16): a(f'  v_add_f32 v{s}, v{s}, v{f+i}')
        wave_sum(s, 58)
        a(f'  v_mul_f32 v{s}, 0x3a800000, v{s}       ; /1024')
        for i in range(16): a(f'  v_sub_f32 v{f+i}, v{f+i}, v{s}')
        a(f'  v_mul_f32 v{s}, v{f}, v{f}')
        for i in range(1, 16): a(f'  v_fmac_f32 v{s}, v{f+i}, v{f+i}')
        wave_sum(s, 58)
        a(f'''  v_mov_b32 v59, 0x3727c5ac             ; 1e-5
  v_fmac_f32 v59, 0x3a800000, v{s}
  v_rsq_f32 v59, v59
  s_nop 0''')
        for i in range(16): a(f'  v_mul_f32 v{f+i}, v{f+i}, v59')
        src = 4 + 8*r
        for i in range(8): a(f'  v_cvt_pk_bf16_f32 v{src+i}, v{f+2*i}, v{f+2*i+1}')
        for h in range(2):
            a(f'  buffer_store_dwordx4 {vr(src + 4*h, 4)}, v1, s[{T.sWS}:{T.sWS+3}], s40 offen offset:{r*2048 + h*1024}{sc}')

def emit_ring_base(a, dst, tmp):
    a(f'''  s_add_u32 s{dst}, s{T.sWS}, {RING}
  s_addc_u32 s{dst+1}, s{T.sWS+1}, 0
  s_sub_u32 s{tmp}, 0, s{dst}
  s_and_b32 s{tmp}, s{tmp}, 0x3fffff
  s_add_u32 s{dst}, s{dst}, s{tmp}
  s_addc_u32 s{dst+1}, s{dst+1}, 0''')
def emit_ring_init(a, sId, sc=''):
    emit_ring_base(a, 52, 40)
    srd(a, 8, 's52', 's53', 4*MB)
    a(f'''  s_lshl_b32 s40, s{sId}, 14
  s_lshl_b32 s41, s{T.sW}, 12
  s_add_u32 s40, s40, s41
  v_lshlrev_b32 v1, 4, v0
  v_mov_b32 v4, -1
  v_mov_b32 v5, -1
  v_mov_b32 v6, -1
  v_mov_b32 v7, -1''')
    for i in range(4):
        a(f'  buffer_store_dwordx4 v[4:7], v1, s[8:11], s40 offen offset:{i*1024}{sc}')

def emit_wo_repack(a, sKs, sc=''):
    load_ptr(a, 52, A_WO)
    a(f'''  s_lshl_b32 s40, s{sKs}, 16            ; 32 rows * 2048
  s_lshl_b32 s41, s{T.sW}, 9
  s_add_u32 s40, s40, s41
  s_lshl_b32 s42, s{T.sW}, 14
  s_waitcnt lgkmcnt(0)''')
    srd(a, 8, 's52', 's53', 4096*1024*2)
    lanesum(a, 'v1', [(5,1,11),(0,5,4)], 0)
    a('  s_mov_b32 s43, s42')
    for i in range(16):
        a(f'''  s_mov_b32 m0, s43
  s_add_u32 s43, s43, 1024
  buffer_load_dwordx4 v1, s[8:11], s40 offen lds
  s_add_u32 s40, s40, 4096''')
    lanesum(a, 'v2', [(4,2,11),(2,2,9),(0,2,4)], 0, ['s42'])
    a(f'''  s_lshl_b32 s40, s{T.sW}, 21           ; 16w*128*1024
  s_lshl_b32 s41, s{sKs}, 10
  s_add_u32 s40, s40, s41
  s_add_u32 s40, s40, {WOF}
  v_lshlrev_b32 v3, 4, v0
  s_waitcnt vmcnt(0)''')
    for t in range(16):
        p, h = t >> 1, t & 1; r = 8 + 4*(t & 3)
        a(f'''  ds_read_b64_tr_b16 {vr(r,2)}, v2 offset:{p*64 + h*8}
  ds_read_b64_tr_b16 {vr(r+2,2)}, v2 offset:{p*64 + h*8 + 16*512}
  s_waitcnt lgkmcnt(0)
  buffer_store_dwordx4 {vr(r,4)}, v3, s[{T.sWS}:{T.sWS+3}], s40 offen{sc}
  s_add_u32 s40, s40, {128*1024}''')

TY_K, TY_Q, TY_GU, TY_D, TY_V = 0, 1, 2, 3, 4

def emit_gemm_params(a, ty):
    g = GM
    if ty in (TY_K, TY_Q, TY_V):
        load_ptr(a, 52, {TY_K: A_WK, TY_Q: A_WQ, TY_V: A_WV}[ty])
        a(f'''  s_mov_b32 s{T.sLdx}, 2048
  s_mov_b32 s{T.sLdw}, 8192
  s_mul_i32 s{g.sOX}, s{T.sM}, {256*2048}
  s_add_u32 s{g.sOX}, s{g.sOX}, {XN}
  s_lshl_b32 s{g.sOW0}, s{T.sN}, 9
  s_add_u32 s{g.sOW1}, s{g.sOW0}, 256
  s_mov_b32 s{T.sNL}, {1024//128 - 2}
  s_waitcnt lgkmcnt(0)''')
        srd(a, g.sW0, 's52', 's53', 1024*4096*2); srd(a, g.sW1, 's52', 's53', 1024*4096*2)
    elif ty == TY_GU:
        load_ptr(a, 52, B_WG); load_ptr(a, 54, B_WU)
        a(f'''  s_mov_b32 s{T.sLdx}, 2048
  s_mov_b32 s{T.sLdw}, 7168
  s_mul_i32 s{g.sOX}, s{T.sM}, {256*2048}
  s_add_u32 s{g.sOX}, s{g.sOX}, {XN}
  s_lshl_b32 s{g.sOW0}, s{T.sN}, 8
  s_mov_b32 s{g.sOW1}, s{g.sOW0}
  s_mov_b32 s{T.sNL}, {1024//128 - 2}
  s_waitcnt lgkmcnt(0)''')
        srd(a, g.sW0, 's52', 's53', 1024*3584*2); srd(a, g.sW1, 's54', 's55', 1024*3584*2)
    else:
        load_ptr(a, 52, B_WD)
        a(f'''  s_mov_b32 s{T.sLdx}, 7168
  s_mov_b32 s{T.sLdw}, 2048
  s_mul_i32 s{g.sOX}, s{T.sM}, {256*7168}
  s_add_u32 s{g.sOX}, s{g.sOX}, {H}
  s_lshl_b32 s{g.sOW0}, s{T.sN}, 9
  s_add_u32 s{g.sOW1}, s{g.sOW0}, 256
  s_mov_b32 s{T.sNL}, {3584//128 - 2}
  s_waitcnt lgkmcnt(0)''')
        srd(a, g.sW0, 's52', 's53', 3584*1024*2); srd(a, g.sW1, 's52', 's53', 3584*1024*2)
    a(f'''  s_mov_b32 s{g.sX}, s{T.sWS}
  s_mov_b32 s{g.sX+1}, s{T.sWS+1}
  s_mov_b32 s{g.sX+2}, s{T.sWS+2}
  s_mov_b32 s{g.sX+3}, s{T.sWS+3}''')

def emit_gemm_main(a, swap, lab):
    g = GM
    setup_lane_consts(a, f's{T.sLdx}', f's{T.sLdw}')
    for st in range(3):
        D, adv = dma_ops(st)
        for m0, ld in D:
            a('  ' + m0); a('  s_nop 0'); a('  ' + ld)
        for x in adv: a('  ' + x)
    a('  s_waitcnt vmcnt(16)\n  s_barrier')
    for r in read_ops(0, 0): a('  ' + r)
    for s in range(4): step(a, s, swap, first=(s == 0))
    a(f'  s_mov_b32 s{g.sLoop}, s{T.sNL}')
    a(f'{lab}_loop:')
    for s in range(4): step(a, s, swap)
    a(f'''  s_sub_u32 s{g.sLoop}, s{g.sLoop}, 1
  s_cmp_lg_u32 s{g.sLoop}, 0
  s_cbranch_scc1 {lab}_loop''')
    step(a, 0, swap)
    step(a, 1, swap, dma=False, vm=8)
    step(a, 2, swap, dma=False, vm=0)
    step(a, 3, swap, dma=False, reads=False, vm=None)
    a('  s_nop 7')

def accn(i, j, r): return (i*8 + j)*4 + r

def emit_epi_kq(a, base, sc=''):
    a(f'''  v_and_b32 v20, 63, v0
  v_and_b32 v21, 15, v20
  v_bfe_u32 v22, v20, 4, 1
  v_bfe_u32 v24, v20, 5, 1
  v_lshlrev_b32 v23, 4, v21             ; tok*16
  v_lshl_add_u32 v23, v22, 9, v23       ; (g&1)*2*256
  v_lshl_add_u32 v23, v24, 8, v23       ; (g>>1)*256
  s_lshr_b32 s40, s{T.sW}, 1            ; wm
  s_and_b32 s41, s{T.sW}, 1             ; wn
  s_lshl_b32 s42, s{T.sM}, 3
  s_lshl_b32 s43, s40, 2
  s_add_u32 s42, s42, s43
  s_lshl_b32 s42, s42, 18
  s_lshl_b32 s43, s{T.sN}, 14           ; head 2n * 8192
  s_add_u32 s42, s42, s43
  s_lshl_b32 s43, s41, 11
  s_add_u32 s42, s42, s43
  s_add_u32 s45, s42, {base}''')
    n = 0
    for i in range(8):
        for rho in range(2):
            a(f'  s_add_u32 s46, s45, {(i >> 1)*262144 + (i & 1)*4096 + rho*8192}')
            for q in range(2):
                j = 4*rho + 2*q; t = 32 + (n & 1)*16; n += 1
                for u in range(8):
                    a(f'  v_accvgpr_read_b32 v{t+u}, a{accn(i, j + (u >> 2), u & 3)}')
                a(f'''  v_cvt_pk_bf16_f32 v{t+8}, v{t}, v{t+1}
  v_cvt_pk_bf16_f32 v{t+9}, v{t+2}, v{t+3}
  v_cvt_pk_bf16_f32 v{t+10}, v{t+4}, v{t+5}
  v_cvt_pk_bf16_f32 v{t+11}, v{t+6}, v{t+7}
  s_nop 1
  v_permlane16_swap_b32 v{t+8}, v{t+10}
  v_permlane16_swap_b32 v{t+9}, v{t+11}
  buffer_store_dwordx4 {vr(t+8,4)}, v23, s[{T.sWS}:{T.sWS+3}], s46 offen offset:{q*1024}{sc}''')

def emit_epi_v(a, sc=''):
    a(f'''  v_and_b32 v20, 63, v0
  v_lshlrev_b32 v23, 4, v20
  s_lshr_b32 s40, s{T.sW}, 1
  s_and_b32 s41, s{T.sW}, 1
  s_lshl_b32 s42, s{T.sM}, 3
  s_lshl_b32 s43, s40, 2
  s_add_u32 s42, s42, s43
  s_lshl_b32 s42, s42, 18
  s_lshl_b32 s43, s{T.sN}, 14
  s_add_u32 s42, s42, s43
  s_lshl_b32 s43, s41, 12
  s_add_u32 s42, s42, s43
  s_add_u32 s45, s42, {VT}''')
    n = 0
    for ip in range(4):
        for rho in range(2):
            a(f'  s_add_u32 s46, s45, {ip*262144 + rho*8192}')
            for jj in range(4):
                j = 4*rho + jj; t = 32 + (n & 1)*16; n += 1
                for u in range(8):
                    a(f'  v_accvgpr_read_b32 v{t+u}, a{accn(2*ip + (u >> 2), j, u & 3)}')
                a(f'''  v_cvt_pk_bf16_f32 v{t+8}, v{t}, v{t+1}
  v_cvt_pk_bf16_f32 v{t+9}, v{t+2}, v{t+3}
  v_cvt_pk_bf16_f32 v{t+10}, v{t+4}, v{t+5}
  v_cvt_pk_bf16_f32 v{t+11}, v{t+6}, v{t+7}
  buffer_store_dwordx4 {vr(t+8,4)}, v23, s[{T.sWS}:{T.sWS+3}], s46 offen offset:{jj*1024}{sc}''')

def rowmajor_addr(a, ld, coltile_shift, base):
    a(f'''  v_and_b32 v20, 63, v0
  v_and_b32 v21, 15, v20
  v_bfe_u32 v22, v20, 4, 1
  v_bfe_u32 v24, v20, 5, 1
  s_lshr_b32 s40, s{T.sW}, 1
  s_and_b32 s41, s{T.sW}, 1
  s_lshl_b32 s42, s{T.sM}, 8
  s_lshl_b32 s43, s40, 7
  s_add_u32 s42, s42, s43
  s_mul_i32 s42, s42, {ld}
  v_mul_u32_u24 v23, {ld}, v21
  v_lshl_add_u32 v23, v22, 5, v23       ; (g&1)*16 cols
  v_lshl_add_u32 v23, v24, 4, v23       ; (g>>1)*8 cols
  s_lshl_b32 s43, s{T.sN}, {coltile_shift}
  s_add_u32 s42, s42, s43
  s_lshl_b32 s43, s41, 7
  s_add_u32 s42, s42, s43
  s_add_u32 s45, s42, {base}''')

def emit_epi_gu(a, sc=''):
    rowmajor_addr(a, 7168, 8, H)
    n = 0
    for i in range(8):
        for q in range(2):
            t = 32 + (n & 1)*24; n += 1
            for u in range(8):
                a(f'  v_accvgpr_read_b32 v{t+u}, a{accn(i, 2*q + (u >> 2), u & 3)}')
                a(f'  v_accvgpr_read_b32 v{t+8+u}, a{accn(i, 4 + 2*q + (u >> 2), u & 3)}')
            for u in range(8): a(f'  v_max_f32 v{t+u}, 0, v{t+u}')
            for u in range(8): a(f'  v_mul_f32 v{t+u}, v{t+u}, v{t+8+u}')
            a(f'''  v_cvt_pk_bf16_f32 v{t+16}, v{t}, v{t+1}
  v_cvt_pk_bf16_f32 v{t+17}, v{t+2}, v{t+3}
  v_cvt_pk_bf16_f32 v{t+18}, v{t+4}, v{t+5}
  v_cvt_pk_bf16_f32 v{t+19}, v{t+6}, v{t+7}
  s_nop 1
  v_permlane16_swap_b32 v{t+16}, v{t+18}
  v_permlane16_swap_b32 v{t+17}, v{t+19}
  buffer_store_dwordx4 {vr(t+16,4)}, v23, s[{T.sWS}:{T.sWS+3}], s45 offen offset:{q*64}{sc}''')
        a(f'  s_add_u32 s45, s45, {16*7168}')

def emit_epi_d(a, sc=''):
    rowmajor_addr(a, 2048, 9, G)
    n = 0
    for i in range(8):
        for rho in range(2):
            for q in range(2):
                j = 4*rho + 2*q; t = 32 + (n & 1)*24; n += 1
                for u in range(8): a(f'  v_accvgpr_read_b32 v{t+u}, a{accn(i, j + (u >> 2), u & 3)}')
                for u in range(8): a(f'  v_mul_f32 v{t+8+u}, 0xbfb8aa3b, v{t+u}')
                for u in range(8): a(f'  v_exp_f32 v{t+8+u}, v{t+8+u}')
                for u in range(8): a(f'  v_add_f32 v{t+8+u}, 1.0, v{t+8+u}')
                for u in range(8): a(f'  v_rcp_f32 v{t+8+u}, v{t+8+u}')
                for u in range(8): a(f'  v_mul_f32 v{t+u}, v{t+u}, v{t+8+u}')
                a(f'''  v_cvt_pk_bf16_f32 v{t+16}, v{t}, v{t+1}
  v_cvt_pk_bf16_f32 v{t+17}, v{t+2}, v{t+3}
  v_cvt_pk_bf16_f32 v{t+18}, v{t+4}, v{t+5}
  v_cvt_pk_bf16_f32 v{t+19}, v{t+6}, v{t+7}
  s_nop 1
  v_permlane16_swap_b32 v{t+16}, v{t+18}
  v_permlane16_swap_b32 v{t+17}, v{t+19}
  buffer_store_dwordx4 {vr(t+16,4)}, v23, s[{T.sWS}:{T.sWS+3}], s45 offen offset:{rho*256 + q*64}{sc}''')
        a(f'  s_add_u32 s45, s45, {16*2048}')

def emit_attn(a, sSeg, sHg, sc=''):
    vQ, vK, vV, vKM, vVM = 16, 48, 80, 112, 128
    vS = 136
    vP = 160
    vPa, vPb = 164, 166
    vOne = 168; vSum = 172; vPV = 176
    vT, vT2, vRi = 208, 209, 210
    vPk = 212
    vNinf = 216
    WS = f's[{T.sWS}:{T.sWS+3}]'
    a(f'''  s_lshl_b32 s40, s{sHg}, 2
  s_add_u32 s40, s40, s{T.sW}           ; head
  s_lshl_b32 s41, s{sSeg}, 18
  s_lshl_b32 s42, s40, 13
  s_add_u32 s41, s41, s42               ; (seg*32+head)*8192
  s_add_u32 s42, s41, {Q}
  s_add_u32 s43, s41, {K}
  s_add_u32 s44, s41, {VT}
  s_lshl_b32 s45, s{sSeg}, 16
  s_lshl_b32 s46, s40, 11
  s_add_u32 s45, s45, s46               ; (seg*32+head)*2048
  s_add_u32 s46, s45, {KM}
  s_add_u32 s47, s45, {VM}
  v_lshlrev_b32 v1, 4, v0
  v_add_u32 v2, 4096, v1
  v_lshlrev_b32 v3, 3, v0''')
    lanesum(a, 'v4', [(2,2,7),(0,1,6),(4,2,4)], 0)
    for ks in range(4): a(f'  buffer_load_dwordx4 {vr(vKM+4*ks,4)}, v4, {WS}, s46 offen offset:{ks*512}')
    for i in range(8): a(f'  buffer_load_dwordx4 {vr(vQ+4*i,4)}, v{1 + (i >> 2)}, {WS}, s42 offen offset:{(i & 3)*1024}')
    for i in range(8): a(f'  buffer_load_dwordx4 {vr(vK+4*i,4)}, v{1 + (i >> 2)}, {WS}, s43 offen offset:{(i & 3)*1024}')
    for es in range(4): a(f'  buffer_load_dwordx2 {vr(vVM+2*es,2)}, v3, {WS}, s47 offen offset:{es*512}')
    for i in range(8): a(f'  buffer_load_dwordx4 {vr(vV+4*i,4)}, v{1 + (i >> 2)}, {WS}, s44 offen offset:{(i & 3)*1024}')
    a(f'''  v_and_b32 v5, 15, v0
  v_lshrrev_b32 v6, 4, v0
  v_lshlrev_b32 v6, 2, v6''')
    for r in range(4):
        a(f'  v_add_u32 v7, {r}, v6\n  v_cmp_le_u32 s[{54+2*r}:{55+2*r}], v7, v5')
    for i in range(4): a(f'  v_mov_b32 v{vOne+i}, 0x3f803f80')
    a(f'''  v_mov_b32 v{vNinf}, 0xff800000
  v_mov_b32 v{vPa+1}, 0
  v_mov_b32 v{vPb}, 0
  s_mov_b32 s48, 0x3e0293ee             ; 128^-0.5 * log2(e)
  s_lshl_b32 s49, s{sSeg}, 18
  s_lshl_b32 s50, s40, 12
  s_add_u32 s49, s49, s50
  s_add_u32 s49, s49, {O}
  s_waitcnt vmcnt(12)''')
    for qt in range(2):
        S = vS + 12*qt
        for ks in range(4):
            q = vr(vQ + 16*qt + 4*ks, 4)
            a(f'  v_mfma_f32_16x16x32_bf16 {vr(S,4)}, {vr(vKM+4*ks,4)}, {q}, {0 if ks == 0 else vr(S,4)}')
            for kt in range(qt + 1):
                D = vr(S + 4 + 4*kt, 4)
                a(f'  v_mfma_f32_16x16x32_bf16 {D}, {vr(vK+16*kt+4*ks,4)}, {q}, {0 if ks == 0 else D}')
    a('  s_nop 7')
    for qt in range(2):
        S = vS + 12*qt; dg = S + 4 + 4*qt
        for r in range(4): a(f'  v_cndmask_b32 v{dg+r}, v{vNinf}, v{dg+r}, s[{54+2*r}:{55+2*r}]')
        regs = [S, S+1] + list(range(S+4, S+8+4*qt))
        a(f'  v_max3_f32 v{vT}, v{regs[0]}, v{regs[1]}, v{regs[2]}')
        i = 3
        while i < len(regs):
            if i + 1 < len(regs): a(f'  v_max3_f32 v{vT}, v{vT}, v{regs[i]}, v{regs[i+1]}'); i += 2
            else: a(f'  v_max_f32 v{vT}, v{vT}, v{regs[i]}'); i += 1
        a(f'''  v_mov_b32 v{vT2}, v{vT}
  s_nop 1
  v_permlane32_swap_b32 v{vT}, v{vT2}
  v_max_f32 v{vT}, v{vT}, v{vT2}
  v_mov_b32 v{vT2}, v{vT}
  s_nop 1
  v_permlane16_swap_b32 v{vT}, v{vT2}
  v_max_f32 v{vT}, v{vT}, v{vT2}
  v_mul_f32 v{vT}, s48, v{vT}''')
        for r in regs: a(f'  v_fma_f32 v{r}, v{r}, s48, -v{vT}')
        for r in regs: a(f'  v_exp_f32 v{r}, v{r}')
        a(f'''  s_nop 0
  v_cvt_pk_bf16_f32 v{vPa}, v{S}, v{S+1}
  v_cvt_pk_bf16_f32 v{vPb+1}, v{S}, v{S+1}''')
        for i in range(2 + 2*qt): a(f'  v_cvt_pk_bf16_f32 v{vP+i}, v{S+4+2*i}, v{S+5+2*i}')
        if qt == 0: a('  s_waitcnt vmcnt(0)')
        a('  s_nop 1')
        a(f'  v_mfma_f32_16x16x16_bf16 {vr(vSum,4)}, {vr(vOne,2)}, {vr(vPa,2)}, 0')
        for tau in range(8):
            es, tp = tau >> 1, tau & 1
            a(f'  v_mfma_f32_16x16x16_bf16 {vr(vPV+4*tau,4)}, {vr(vVM+2*es,2)}, {vr(vPb if tp else vPa,2)}, 0')
        if qt == 0:
            a(f'  v_mfma_f32_16x16x16_bf16 {vr(vSum,4)}, {vr(vOne,2)}, {vr(vP,2)}, {vr(vSum,4)}')
            for tau in range(8):
                a(f'  v_mfma_f32_16x16x16_bf16 {vr(vPV+4*tau,4)}, {vr(vV+4*tau,2)}, {vr(vP,2)}, {vr(vPV+4*tau,4)}')
        else:
            a(f'  v_mfma_f32_16x16x32_bf16 {vr(vSum,4)}, {vr(vOne,4)}, {vr(vP,4)}, {vr(vSum,4)}')
            for tau in range(8):
                a(f'  v_mfma_f32_16x16x32_bf16 {vr(vPV+4*tau,4)}, {vr(vV+4*tau,4)}, {vr(vP,4)}, {vr(vPV+4*tau,4)}')
        a(f'''  s_nop 7
  v_rcp_f32 v{vRi}, v{vSum}
  s_nop 0''')
        for p in range(4):
            b = vPV + 8*p
            for i in range(8): a(f'  v_mul_f32 v{b+i}, v{b+i}, v{vRi}')
            t = vPk + 4*(p & 1)*0
            t = vPk if (p & 1) == 0 else 220
            for i in range(4): a(f'  v_cvt_pk_bf16_f32 v{t+i}, v{b+2*i}, v{b+2*i+1}')
            a(f'  buffer_store_dwordx4 {vr(t,4)}, v1, {WS}, s49 offen offset:{p*1024}{sc}')
        if qt == 0: a(f'  s_add_u32 s49, s49, {128*1024}\n  s_nop 1')

def emit_wo_gemm(a, sTt, sNt, MT, NT, depth=6, sc='', lds0=0):
    WS = f's[{T.sWS}:{T.sWS+3}]'
    nf = MT + NT
    F0 = 32
    assert F0 + depth*nf*4 <= 248
    ACC = lambda nt, mt: (nt*MT + mt)*4
    a(f'''  s_lshl_b32 s40, s{T.sW}, 15
  s_lshl_b32 s41, s{sNt}, 17
  s_add_u32 s41, s41, s40
  s_add_u32 s41, s41, {WOF}
  s_lshl_b32 s42, s{sTt}, 17
  s_add_u32 s42, s42, s40
  s_add_u32 s42, s42, {O}
  v_lshlrev_b32 v1, 4, v0''')
    for nt in range(NT): a(f'  s_add_u32 s{60+nt}, s41, {nt*131072}')
    for mt in range(MT): a(f'  s_add_u32 s{60+NT+mt}, s42, {mt*131072}')
    def loads(ks):
        st = ks % depth; L = []
        for f in range(nf):
            r = F0 + (st*nf + f)*4
            L.append(f'buffer_load_dwordx4 {vr(r,4)}, v{1 + ((ks >> 2) & 1)}, {WS}, s{60+f} offen offset:{(ks & 3)*1024}')
        return L
    a('  v_add_u32 v2, 4096, v1')
    def bump(ks):
        if ks % 4 == 0 and ks >= 8: a(f'  v_add_u32 v{1 + ((ks >> 2) & 1)}, 8192, v{1 + ((ks >> 2) & 1)}')
    for ks in range(depth):
        bump(ks)
        for l in loads(ks): a('  ' + l)
    for ks in range(32):
        rem = min(depth - 1, 31 - ks)
        a(f'  s_waitcnt vmcnt({rem*nf})')
        st = ks % depth
        for nt in range(NT):
            for mt in range(MT):
                A = vr(F0 + (st*nf + nt)*4, 4); B = vr(F0 + (st*nf + NT + mt)*4, 4)
                D = ar(ACC(nt, mt), 4)
                a(f'  v_mfma_f32_16x16x32_bf16 {D}, {A}, {B}, {0 if ks == 0 else D}')
        if ks + depth < 32:
            a('  s_nop 2')
            bump(ks + depth)
            for l in loads(ks + depth): a('  ' + l)
    ntile = MT*NT
    a(f'''  s_mul_i32 s40, s{T.sW}, {ntile*1024}
  s_add_u32 s40, s40, {lds0}
  v_lshlrev_b32 v3, 4, v0
  v_add_u32 v4, s40, v3
  v_add_u32 v3, {lds0}, v3
  s_nop 7''')
    for t in range(ntile): a(f'  ds_write_b128 v4, {ar(4*t,4)} offset:{t*1024}')
    items = [(mt, np_) for mt in range(MT) for np_ in range(NT//2)]
    per = (len(items) + 3)//4
    load_ptr(a, 52, A_X); load_ptr(a, 54, D_OUT)
    lanesum(a, 'v5', [(0,4,11),(4,2,4)], 0)
    a('  s_waitcnt lgkmcnt(0)')
    srd(a, 8, 's52', 's53', 2048*1024*2); srd(a, T.sOut, 's54', 's55', 2048*1024*2)
    a(f'''  s_lshl_b32 s43, s{sTt}, 15
  s_lshl_b32 s44, s{sNt}, 5
  s_add_u32 s43, s43, s44''')
    lab = a.label('L_wo')
    a('  s_barrier')
    for w in range(4):
        mine = items[w*per:(w+1)*per]
        if not mine:
            continue
        a(f'  s_cmp_eq_u32 s{T.sW}, {w}\n  s_cbranch_scc0 {lab}_n{w}')
        for k, (mt, np_) in enumerate(mine):
            a(f'  s_add_u32 s{44+k}, s43, {mt*32768 + np_*64}')
            a(f'  buffer_load_dwordx4 {vr(16+8*k,4)}, v5, s[8:11], s{44+k} offen')
            a(f'  s_add_u32 s{48}, s{44+k}, {G}')
            a(f'  buffer_load_dwordx4 {vr(20+8*k,4)}, v5, {WS}, s48 offen')
        for k, (mt, np_) in enumerate(mine):
            Z = 64 + 0
            for h in range(2):
                t = (2*np_ + h)*MT + mt
                for w2 in range(4):
                    a(f'  ds_read_b128 {vr(Z + (h*4 + w2)*4, 4)}, v3 offset:{(w2*ntile + t)*1024}')
            a('  s_waitcnt lgkmcnt(0)')
            for h in range(2):
                b = Z + h*16
                a(f'''  v_pk_add_f32 {vr(b,2)}, {vr(b,2)}, {vr(b+4,2)}
  v_pk_add_f32 {vr(b+2,2)}, {vr(b+2,2)}, {vr(b+6,2)}
  v_pk_add_f32 {vr(b+8,2)}, {vr(b+8,2)}, {vr(b+12,2)}
  v_pk_add_f32 {vr(b+10,2)}, {vr(b+10,2)}, {vr(b+14,2)}
  v_pk_add_f32 {vr(b,2)}, {vr(b,2)}, {vr(b+8,2)}
  v_pk_add_f32 {vr(b+2,2)}, {vr(b+2,2)}, {vr(b+10,2)}''')
            a(f'  s_waitcnt vmcnt({2*(len(mine) - 1 - k)  + k})')
            X = 16 + 8*k; Gv = X + 4; U = 100
            for i in range(4):
                a(f'''  v_lshlrev_b32 v{U}, 16, v{X+i}
  v_and_b32 v{U+1}, 0xffff0000, v{X+i}
  v_lshlrev_b32 v{U+2}, 16, v{Gv+i}
  v_and_b32 v{U+3}, 0xffff0000, v{Gv+i}''')
                s0 = Z + (i >> 1)*16 + (i & 1)*2
                a(f'''  v_fmac_f32 v{U}, v{s0}, v{U+2}
  v_fmac_f32 v{U+1}, v{s0+1}, v{U+3}
  v_cvt_pk_bf16_f32 v{U+4+i}, v{U}, v{U+1}''')
            a(f'  buffer_store_dwordx4 {vr(U+4,4)}, v5, s[{T.sOut}:{T.sOut+3}], s{44+k} offen{sc}\n  s_nop 1')
        a(f'  s_branch {lab}_done\n{lab}_n{w}:')
    a(f'{lab}_done:')
```

```python
from lib_asm import *

def lanesum(a, dst, terms, const=0, sregs=(), vl='v0', tmp='v255'):
    a(f'  v_mov_b32 {dst}, {hex(const) if const > 64 else const}')
    for (pos, width, shift) in terms:
        a(f'  v_bfe_u32 {tmp}, {vl}, {pos}, {width}')
        a(f'  v_lshl_add_u32 {dst}, {tmp}, {shift}, {dst}')
    for s in sregs:
        a(f'  v_add_u32 {dst}, {s}, {dst}')

def srd(a, r, lo, hi, size):
    a(f'''  s_mov_b32 s{r}, {lo}
  s_mov_b32 s{r+1}, {hi}
  s_mov_b32 s{r+2}, {size if isinstance(size, str) else hex(size)}
  s_mov_b32 s{r+3}, 0x20000''')

def vr(b, n):
    return f'v[{b}:{b+n-1}]' if n > 1 else f'v{b}'
def ar(b, n):
    return f'a[{b}:{b+n-1}]' if n > 1 else f'a{b}'

def umax_chain(a, dst, regs):
    regs = list(regs)
    if len(regs) == 2:
        a(f'  v_max_u32 v{dst}, v{regs[0]}, v{regs[1]}'); return
    a(f'  v_max3_u32 v{dst}, v{regs[0]}, v{regs[1]}, v{regs[2]}')
    i = 3
    while i < len(regs):
        if i + 1 < len(regs):
            a(f'  v_max3_u32 v{dst}, v{dst}, v{regs[i]}, v{regs[i+1]}'); i += 2
        else:
            a(f'  v_max_u32 v{dst}, v{dst}, v{regs[i]}'); i += 1
```

```python
import sys
from tasks import *
from chain import *
import chain
from role import *
out = sys.argv[1]
cfg = dict(par=1)
for x in sys.argv[2:]:
    k, v = x.split('='); cfg[k] = int(v)
HDR = open('recurrent_scan__memory_aug_recurrent_mem_tr__glu_gated_reglu__prompt.s.ref').read().split('\n')
hdr = [l for l in HDR[:15]]
a = Asm()
for l in hdr: a(l)
KL = [('prep_kernel', 256, 65536), ('gemm_kernel', 608, 131072), ('down_kernel', 32, 131072), ('chain_kernel', 256, 131072),
      ('attn_kernel', 512, 0), ('wo_kernel', 512, 65536)]
for n, g, l in KL: a(f'; @launch kernel={n} grid=({g},1,1) block=(256,1,1) lds={l}')
a('.amdgcn_target "amdgcn-amd-amdhsa--gfx950"')
def head(name, n, keep_tid=False):
    a(kernel_head(name))
    a(f'''  s_cmp_ge_u32 s2, {n}
  s_cbranch_scc1 {name}_end
  v_lshrrev_b32 v1, 6, v0
  v_and_b32 v0, 63, v0
  s_nop 0
  v_readfirstlane_b32 s{T.sW}, v1''')
    emit_ws_srd(a)
def tail(name):
    a(f'{name}_end:\n  s_endpgm')
descs = []
head('prep_kernel', 256)
emit_ln(a, 2)
emit_ring_init(a, 2)
a('  s_cmp_ge_u32 s2, 128\n  s_cbranch_scc1 prep_kernel_end')
emit_wo_repack(a, 2)
tail('prep_kernel'); descs.append(kernel_desc('prep_kernel', 256, accum=256))
head('gemm_kernel', 608)
a(f'''  s_cmp_ge_u32 s2, 384
  s_cbranch_scc1 G_gu
  s_lshr_b32 s{T.sTy}, s2, 7
  s_and_b32 s40, s2, 127
  s_and_b32 s{T.sM}, s40, 7
  s_lshr_b32 s{T.sN}, s40, 3
  s_cmp_eq_u32 s{T.sTy}, 1
  s_cbranch_scc1 G_v
  s_cmp_eq_u32 s{T.sTy}, 0
  s_cbranch_scc0 G_q''')
emit_gemm_params(a, TY_K); a(f'  s_mov_b32 s35, {K}\n  s_branch G_n')
a('G_q:'); emit_gemm_params(a, TY_Q); a(f'  s_mov_b32 s35, {Q}\n  s_branch G_n')
a(f'''G_gu:
  s_sub_u32 s40, s2, 384
  s_and_b32 s{T.sM}, s40, 7
  s_lshr_b32 s{T.sN}, s40, 3
  s_mov_b32 s{T.sTy}, 9''')
emit_gemm_params(a, TY_GU)
a('G_n:')
emit_gemm_main(a, False, 'G_n')
a(f'  s_cmp_eq_u32 s{T.sTy}, 9\n  s_cbranch_scc1 G_egu')
emit_epi_kq(a, 's35'); a('  s_branch gemm_kernel_end')
a('G_egu:'); emit_epi_gu(a); a('  s_branch gemm_kernel_end')
a('G_v:'); emit_gemm_params(a, TY_V); emit_gemm_main(a, True, 'G_s'); emit_epi_v(a)
tail('gemm_kernel'); descs.append(kernel_desc('gemm_kernel', 512, accum=256))
head('down_kernel', 32)
a(f'  s_and_b32 s{T.sM}, s2, 7\n  s_lshr_b32 s{T.sN}, s2, 3')
emit_gemm_params(a, TY_D); emit_gemm_main(a, False, 'D_n'); emit_epi_d(a)
tail('down_kernel'); descs.append(kernel_desc('down_kernel', 512, accum=256))
c = C
a(kernel_head('chain_kernel'))
a(f'''  s_cmp_ge_u32 s2, 256
  s_cbranch_scc1 L_end
  s_load_dwordx4 s[64:67], s[0:1], {A_MEM0}
  s_load_dwordx4 s[68:71], s[0:1], {A_WK}
  s_load_dwordx2 s[72:73], s[0:1], {A_WO}
  s_load_dwordx4 s[76:79], s[0:1], {D_DBG}
  v_lshrrev_b32 v1, 6, v0
  v_and_b32 v0, 63, v0
  s_nop 0
  v_readfirstlane_b32 s{c.sW}, v1
  s_waitcnt lgkmcnt(0)''')
a('  s_mov_b32 s86, s76\n  s_mov_b32 s87, s77')
emit_roles(a, 86, c.sW, 80, 81, 82, 83, 'L_fail')
a(f'''  s_cmp_eq_u32 s83, 1
  s_cbranch_scc0 L_glob
  s_cmp_ge_u32 s80, 4
  s_cbranch_scc1 L_end
  s_cmp_ge_u32 s81, 32
  s_cbranch_scc1 L_end
  s_mov_b32 s{c.sX}, s80
  s_mov_b32 s{c.sJ}, s81
  s_mov_b32 s84, 0
  s_branch L_go
L_glob:
  s_cmp_ge_u32 s82, 128
  s_cbranch_scc1 L_end
  s_lshr_b32 s{c.sX}, s82, 5
  s_and_b32 s{c.sJ}, s82, 31
  s_mov_b32 s84, 1
L_go:
  s_mov_b32 s{c.sPar}, {cfg['par']}''')
srd(a, c.sWS, 's78', 's79', WS_BYTES)
a(f'''  s_add_u32 s50, s78, {RING}
  s_addc_u32 s51, s79, 0
  s_sub_u32 s52, 0, s50
  s_and_b32 s52, s52, 0x1fffff
  s_add_u32 s50, s50, s52
  s_addc_u32 s51, s51, 0''')
srd(a, c.sRG, 's50', 's51', 4*MB)
srd(a, c.sT0, 's66', 's67', 8*MB); srd(a, c.sT0+4, 's68', 's69', 8*MB)
srd(a, c.sT0+8, 's70', 's71', 8*MB); srd(a, c.sT0+12, 's72', 's73', 8*MB)
srd(a, 88, 's64', 's65', 16384)
emit_setup(a); emit_weights(a)
a('  s_cmp_eq_u32 s84, 1\n  s_cbranch_scc1 L_gl')
emit_start(a, 'L', 88); emit_loop(a, 'L', 'LL', 'L_fail', 'L_end')
a('L_gl:')
emit_start(a, 'G', 88); emit_loop(a, 'G', 'LG', 'L_fail', 'L_end')
a(f'''L_fail:
  v_mov_b32 v1, {DBG_FAIL}
  v_mov_b32 v2, 1
  s_mov_b64 exec, 1
  global_atomic_add v1, v2, s[86:87] sc1
  s_waitcnt vmcnt(0)
L_end:
  s_endpgm''')
descs.append(kernel_desc('chain_kernel', 512, accum=256))
head('attn_kernel', 512)
a(f'  s_lshr_b32 s{T.sM}, s2, 3\n  s_and_b32 s{T.sN}, s2, 7')
emit_attn(a, T.sM, T.sN)
tail('attn_kernel'); descs.append(kernel_desc('attn_kernel', 256, accum=256))
head('wo_kernel', 512)
a(f'''  s_lshr_b32 s{T.sM}, s2, 4
  s_lshl_b32 s{T.sM}, s{T.sM}, 2
  s_and_b32 s{T.sN}, s2, 15
  s_lshl_b32 s{T.sN}, s{T.sN}, 2''')
emit_wo_gemm(a, T.sM, T.sN, 4, 4)
tail('wo_kernel'); descs.append(kernel_desc('wo_kernel', 512, accum=256))
for d in descs: a(d)
open(out, 'w').write(a.text())
check_local(out, 'prep_kernel')
```

```python
MB = 1 << 20
WS_BYTES = 256*MB
XN = 0
G  = 4*MB
Q  = 8*MB
K  = 24*MB
VT = 40*MB
O  = 56*MB
H  = 72*MB
KM = 88*MB
VM = 92*MB
RING = 96*MB
WOF = 104*MB
FLG = 112*MB
R = 4
RC = 0
RB = 2*MB
RA = 3*MB
RING_BYTES = RA + R*65536
F_KV = 0*128
F_Q = 8*128
F_GU = 16*128
F_D = 24*128
F_WOF = 32*128
F_PROG = 33*128
F_CDONE = 34*128
F_O = 40*128
FLG_BYTES = 256*64
A_X, A_MEM0, A_WQ, A_WK, A_WV, A_WO, A_SEG, B_X, B_WG, B_WU, B_WD, D_OUT, D_DBG, D_WS = [8*i for i in range(14)]
DBG_XCD = 0
DBG_GT = 32
DBG_ARR = 36
DBG_FAIL = 40
DBG_QUEUE = 64
```

```python
import sys
from tasks import *
from chain import *
import chain
NAME = 'recurrent_scan__memory_aug_recurrent_mem_tr__glu_gated_reglu__prompt_kernel'
cfg = dict(par=1, prof=0, wbl2=0, stamp=-1, force=0, chainonly=0, nochain=0)
cfg.update(chain.OPT)
out = sys.argv[1]
for x in sys.argv[2:]:
    k, v = x.split('='); cfg[k] = int(v)
for k in chain.OPT: chain.OPT[k] = cfg[k]
SC = ' sc1'
HDR = open('recurrent_scan__memory_aug_recurrent_mem_tr__glu_gated_reglu__prompt.s.ref').read().split('\n')
a = Asm(); c = C
for l in HDR[:15]: a(l)
LDS_TK = 131072
a(f'; @launch grid=(256,1,1) block=(256,1,1) lds={LDS_TK + 256}')
a('.amdgcn_target "amdgcn-amd-amdhsa--gfx950"')
a(kernel_head(NAME))
sDbg = 90; sXcc = 92; sTk = 93; sGt = 94; sMode = 95; sQ = 96; sTkt = 97; sIdx = 98; sBnd = 99
sStamp = 100
WS = f's[{T.sWS}:{T.sWS+3}]'
BOUND = 100000
a(f'''  s_cmp_ge_u32 s2, 256
  s_cbranch_scc1 L_end
  s_load_dwordx2 s[{sDbg}:{sDbg+1}], s[0:1], {D_DBG}
  v_lshrrev_b32 v1, 6, v0
  v_and_b32 v0, 63, v0
  s_getreg_b32 s{sXcc}, hwreg(HW_REG_XCC_ID)
  v_readfirstlane_b32 s{T.sW}, v1
  s_and_b32 s{sXcc}, s{sXcc}, 7
  s_mov_b32 s{c.sW}, s{T.sW}''')
emit_ws_srd(a)
if cfg['prof']:
    a(f'  s_memrealtime s[{sStamp}:{sStamp+1}]')
a(f'''  s_cmp_lg_u32 s{T.sW}, 0
  s_cbranch_scc1 L_tk_w
  s_lshl_b32 s40, s{sXcc}, 2
  v_mov_b32 v250, s40
  v_mov_b32 v251, 1
  v_mov_b32 v252, {DBG_GT}
  s_mov_b64 exec, 1
  global_atomic_add v248, v250, v251, s[{sDbg}:{sDbg+1}] sc0 sc1
  global_atomic_add v249, v252, v251, s[{sDbg}:{sDbg+1}] sc0 sc1
  s_mov_b64 exec, -1
L_tk_w:''')
emit_ln(a, 2, SC)
emit_ring_init(a, 2, SC)
a(f'''  s_cmp_lg_u32 s{T.sW}, 0
  s_cbranch_scc1 L_fl_w
  s_lshl_b32 s40, s2, 6
  s_add_u32 s40, s40, {FLG}
  v_lshlrev_b32 v1, 2, v0
  v_mov_b32 v2, 0
  s_mov_b32 exec_lo, 0xffff
  s_mov_b32 exec_hi, 0
  buffer_store_dword v2, v1, {WS}, s40 offen sc1
  s_mov_b64 exec, 1
  s_waitcnt vmcnt(0)
  v_mov_b32 v1, {LDS_TK}
  ds_write_b64 v1, v[248:249]
  s_waitcnt lgkmcnt(0)
  s_mov_b64 exec, -1
L_fl_w:
  s_waitcnt vmcnt(0)
  s_barrier
  s_cmp_lg_u32 s{T.sW}, 0
  s_cbranch_scc1 L_ar_w
  v_mov_b32 v4, {DBG_ARR}
  v_mov_b32 v2, 1
  s_mov_b64 exec, 1
  global_atomic_add v4, v2, s[{sDbg}:{sDbg+1}] sc1
  s_mov_b64 exec, -1
L_ar_w:
  v_mov_b32 v1, {LDS_TK}
  ds_read_b64 v[2:3], v1
  s_waitcnt lgkmcnt(0)
  v_readfirstlane_b32 s{sTk}, v2
  v_readfirstlane_b32 s{sGt}, v3
  s_mov_b32 s{sMode}, 0
  s_cmp_ge_u32 s{sXcc}, 4
  s_cbranch_scc1 L_wait
  s_cmp_ge_u32 s{sTk}, 32
  s_cbranch_scc1 L_wait
  s_mov_b32 s{c.sX}, s{sXcc}
  s_mov_b32 s{c.sJ}, s{sTk}
L_setup:
  s_load_dwordx4 s[64:67], s[0:1], {A_MEM0}
  s_load_dwordx4 s[68:71], s[0:1], {A_WK}
  s_load_dwordx2 s[72:73], s[0:1], {A_WO}
  s_mov_b32 s{c.sPar}, {cfg['par']}
  s_waitcnt lgkmcnt(0)''')
emit_ring_base(a, 50, 52)
srd(a, c.sRG, 's50', 's51', 4*MB)
srd(a, c.sT0, 's66', 's67', 8*MB); srd(a, c.sT0+4, 's68', 's69', 8*MB)
srd(a, c.sT0+8, 's70', 's71', 8*MB); srd(a, c.sT0+12, 's72', 's73', 8*MB)
srd(a, 76, 's64', 's65', 16384)
emit_setup(a)
emit_weights(a)
def emit_wait_all(p, cand):
    a(f'''{p}:
  s_cmp_lg_u32 s{c.sW}, 0
  s_cbranch_scc1 {p}_w
  v_mov_b32 v17, {DBG_ARR}
  s_mov_b32 s{sBnd}, {4*BOUND}
{p}_p:
  global_load_dword v18, v17, s[{sDbg}:{sDbg+1}] sc1
  s_waitcnt vmcnt(0)
  v_readfirstlane_b32 s40, v18
  s_nop 0
  s_cmp_ge_u32 s40, 256
  s_cbranch_scc1 {p}_ok
  s_sub_u32 s{sBnd}, s{sBnd}, 1
  s_cbranch_scc0 {p}_p
  v_mov_b32 v18, -1
  s_branch {p}_pub
{p}_ok:
  v_mov_b32 v16, 0
  global_load_dwordx4 v[20:23], v16, s[{sDbg}:{sDbg+1}] sc1
  global_load_dwordx4 v[24:27], v16, s[{sDbg}:{sDbg+1}] offset:16 sc1
  s_waitcnt vmcnt(0)
  v_min_u32 v20, v20, v21
  v_min_u32 v22, v22, v23
  v_min_u32 v24, v24, v25
  v_min_u32 v26, v26, v27
  v_min_u32 v20, v20, v22
  v_min_u32 v24, v24, v26
  v_min_u32 v18, v20, v24
{p}_pub:
  v_mov_b32 v16, {LDS_TK}
  ds_write_b32 v16, v18 offset:8
  s_waitcnt lgkmcnt(0)
{p}_w:
  s_barrier
  v_mov_b32 v16, {LDS_TK}
  ds_read_b32 v17, v16 offset:8
  s_waitcnt lgkmcnt(0)
  v_readfirstlane_b32 s40, v17
  s_nop 0
  s_cmp_eq_u32 s40, -1
  s_cbranch_scc1 L_fail
  s_cmp_ge_u32 s40, {32 if not cfg['force'] else 33}
  s_cbranch_scc0 L_glob''')
    if cand: a('  s_branch L_chain_l')
    else:
        a(f'''  s_sub_u32 s{sQ}, s{sXcc}, 4
  s_and_b32 s{sQ}, s{sQ}, 3
  s_branch L_tasks''')
a(f'''  s_cmp_eq_u32 s{sMode}, 2
  s_cbranch_scc1 L_chain_g''')
emit_wait_all('L_waitc', True)
emit_wait_all('L_wait', False)
a(f'''L_glob:
  s_cmp_ge_u32 s{sGt}, 128
  s_cbranch_scc1 L_glob_t
  s_lshr_b32 s{c.sX}, s{sGt}, 5
  s_and_b32 s{c.sJ}, s{sGt}, 31
  s_mov_b32 s{sMode}, 2
  s_branch L_setup
L_glob_t:
  s_sub_u32 s{sQ}, s{sGt}, 128
  s_lshr_b32 s{sQ}, s{sQ}, 5
  s_and_b32 s{sQ}, s{sQ}, 3
  s_branch L_tasks''')

sPub = 48; sFo = 49
def after_a(a, pfx):
    a(f'''  s_cmp_eq_u32 s{sPub}, 0
  s_cbranch_scc1 {pfx}_npub
  s_sub_u32 s{c.sT}, s{c.sS}, 1
  s_max_i32 s{c.sT}, s{c.sT}, 0
  v_mov_b32 v254, s{c.sT}
  s_mov_b32 s{sFo}, {FLG + F_PROG}
  buffer_store_dword v254, off, s[{c.sWS}:{c.sWS+3}], s{sFo} sc1
{pfx}_npub:
  s_cmp_lg_u32 s{c.sW}, 3
  s_cbranch_scc1 {pfx}_nkv
  s_and_b32 s{c.sT}, s{c.sS}, 7
  s_cmp_lg_u32 s{c.sT}, 5
  s_cbranch_scc1 {pfx}_nkv
  s_add_u32 s{c.sT}, s{c.sS}, 3
  s_lshr_b32 s{c.sT}, s{c.sT}, 3
  s_min_u32 s{c.sT}, s{c.sT}, 7
  s_lshl_b32 s{c.sT}, s{c.sT}, 7
  s_add_u32 s{sFo}, s{c.sT}, {FLG + F_KV}
  buffer_load_dword v253, off, s[{c.sWS}:{c.sWS+3}], s{sFo} sc1
{pfx}_nkv:''')
def pre_red1(a, pfx, fail):
    nk = 0 if cfg['nokv'] else 8
    a(f'''  s_cmp_lg_u32 s{c.sW}, 3
  s_cbranch_scc1 {pfx}_kvok
  s_and_b32 s{c.sT}, s{c.sS}, 7
  s_cmp_lg_u32 s{c.sT}, 5
  s_cbranch_scc1 {pfx}_kvok
  s_waitcnt vmcnt({nk})
  s_mov_b32 s{c.sBound}, {BOUND}
{pfx}_kvp:
  v_readfirstlane_b32 s{c.sT}, v253
  s_nop 0
  s_cmp_ge_u32 s{c.sT}, 32
  s_cbranch_scc1 {pfx}_kvok
  buffer_load_dword v253, off, s[{c.sWS}:{c.sWS+3}], s{sFo} sc1
  s_waitcnt vmcnt(0)
  s_sub_u32 s{c.sBound}, s{c.sBound}, 1
  s_cbranch_scc0 {pfx}_kvp
  s_branch {fail}
{pfx}_kvok:''')
if not cfg['chainonly']:
    chain.HOOK['after_a'] = after_a; chain.HOOK['pre_red1'] = pre_red1
def stamp(a, k):
    l = a.label('L_st')
    a(f'  s_cmp_eq_u32 s{c.sS}, {cfg["stamp"]}\n  s_cbranch_scc0 {l}\n  s_memtime s[{64+2*k}:{65+2*k}]\n{l}:')
stf = stamp if cfg['stamp'] >= 0 else None
def chain_entry(mode, pfx):
    a(f'''  s_mov_b32 s{sPub}, 0
  s_add_u32 s50, s{c.sX}, s{c.sJ}
  s_cmp_lg_u32 s50, 0
  s_cbranch_scc1 {pfx}_np
  s_cmp_eq_u32 s{c.sW}, 2
  s_cselect_b32 s{sPub}, 1, 0
{pfx}_np:''')
    if not cfg['chainonly']:
        a(f'''  s_mov_b32 s{sFo}, {FLG + F_KV}
  s_mov_b32 s{c.sBound}, {BOUND}
{pfx}_kv0:
  buffer_load_dword v253, off, s[{c.sWS}:{c.sWS+3}], s{sFo} sc1
  s_waitcnt vmcnt(0)
  v_readfirstlane_b32 s50, v253
  s_nop 0
  s_cmp_ge_u32 s50, 32
  s_cbranch_scc1 {pfx}_kv0ok
  s_sub_u32 s{c.sBound}, s{c.sBound}, 1
  s_cbranch_scc0 {pfx}_kv0
  s_branch L_fail
{pfx}_kv0ok:''')
    if cfg['prof']:
        a('  s_memrealtime s[80:81]\n  s_memtime s[84:85]\n  s_waitcnt lgkmcnt(0)')
    emit_start(a, mode, 76)
    emit_loop(a, mode, pfx, 'L_fail', 'L_chain_done', stamp=stf)
a('L_chain_l:')
if cfg['nochain']:
    a(f'''  s_mov_b32 s50, {FLG + F_PROG}
  v_mov_b32 v16, 64
  buffer_store_dword v16, off, s[4:7], s50 sc1
  s_waitcnt vmcnt(0)
  s_branch L_end''')
chain_entry('L', 'LL')
a('L_chain_g:')
chain_entry('G', 'LG')
a(f'''L_chain_done:
  s_waitcnt vmcnt(0)
  s_barrier''')
if cfg['prof']:
    a(f'''  s_memrealtime s[82:83]
  s_memtime s[86:87]
  s_waitcnt lgkmcnt(0)
  s_lshl_b32 s50, s{c.sX}, 5
  s_add_u32 s50, s50, s{c.sJ}
  s_lshl_b32 s50, s50, 2
  s_add_u32 s50, s50, s{c.sW}
  s_lshl_b32 s50, s50, 6
  s_add_u32 s50, s50, {200*MB}
  v_mov_b32 v1, s50
  s_sub_u32 s86, s86, s84''')
    for k in range(8): a(f'  v_mov_b32 v{2+k}, s{64+2*k}')
    a(f'''  v_mov_b32 v10, s86
  v_mov_b32 v11, s{sStamp}
  v_mov_b32 v12, s80
  v_mov_b32 v13, s82
  s_mov_b64 exec, 1
  buffer_store_dwordx4 v[2:5], v1, s[{c.sWS}:{c.sWS+3}], 0 offen
  buffer_store_dwordx4 v[6:9], v1, s[{c.sWS}:{c.sWS+3}], 0 offen offset:16
  buffer_store_dwordx4 v[10:13], v1, s[{c.sWS}:{c.sWS+3}], 0 offen offset:32
  s_mov_b64 exec, -1''')
a(f'''  s_cmp_lg_u32 s{c.sW}, 0
  s_cbranch_scc1 L_end
  s_mov_b32 s40, {FLG + F_CDONE}
  v_mov_b32 v1, s40
  v_mov_b32 v2, 1
  s_mov_b64 exec, 1
  buffer_atomic_add v2, v1, s[{c.sWS}:{c.sWS+3}], 0 offen sc0 sc1
  s_waitcnt vmcnt(0)
  v_readfirstlane_b32 s40, v2
  s_nop 0
  s_cmp_eq_u32 s40, 127
  s_cbranch_scc0 L_end
  s_mov_b32 s40, {FLG + F_PROG}
  v_mov_b32 v2, 64
  buffer_store_dword v2, off, s[{c.sWS}:{c.sWS+3}], s40 sc1
  s_waitcnt vmcnt(0)
  s_branch L_end''')

def wait_flag(off_const, sreg_idx, target, shift=7):
    l = a.label('L_wf')
    if sreg_idx is None: a(f'  s_mov_b32 s41, {FLG + off_const}')
    else: a(f'  s_lshl_b32 s41, s{sreg_idx}, {shift}\n  s_add_u32 s41, s41, {FLG + off_const}')
    a(f'''  s_cmp_lg_u32 s{T.sW}, 0
  s_cbranch_scc1 {l}_w
  s_mov_b32 s{sBnd}, {BOUND}
{l}_p:
  buffer_load_dword v1, off, {WS}, s41 sc1
  s_waitcnt vmcnt(0)
  v_readfirstlane_b32 s42, v1
  s_nop 0
  s_cmp_ge_u32 s42, {target}
  s_cbranch_scc1 {l}_w
  s_sub_u32 s{sBnd}, s{sBnd}, 1
  s_cbranch_scc0 {l}_p
  v_mov_b32 v1, {DBG_FAIL + 4}
  v_mov_b32 v2, 1
  s_mov_b64 exec, 1
  global_atomic_add v1, v2, s[{sDbg}:{sDbg+1}] sc1
  s_mov_b64 exec, -1
{l}_w:''')
sSig = 35
sBase = 32
a('L_tasks:')
a(f'  s_mov_b32 s{T.sW}, s{c.sW}')
a(f'  s_mov_b32 s{sSig}, -1')
a('L_next:')
a(f'''  s_waitcnt vmcnt(0)
  s_barrier
  s_cmp_lg_u32 s{T.sW}, 0
  s_cbranch_scc1 L_next_w
  s_mov_b64 exec, 1''')
if cfg['prof']:
    a(f'''  s_cmp_eq_u32 s{sSig}, -1
  s_cbranch_scc1 L_nprof
  s_memrealtime s[82:83]
  s_memtime s[74:75]
  s_lshl_b32 s40, s{sQ}, 9
  s_add_u32 s40, s40, s{sTkt}
  s_lshl_b32 s40, s40, 5
  s_add_u32 s40, s40, {201*MB}
  s_waitcnt lgkmcnt(0)
  s_sub_u32 s41, s88, s86
  v_mov_b32 v8, s41
  s_sub_u32 s41, s74, s88
  v_mov_b32 v9, s41
  s_sub_u32 s41, s74, s86
  v_mov_b32 v10, s41
  v_mov_b32 v11, 0
  s_add_u32 s41, s40, 16
  buffer_store_dwordx4 v[8:11], off, {WS}, s41
  v_mov_b32 v4, s80
  v_mov_b32 v5, s84
  v_mov_b32 v6, s82
  s_lshl_b32 s41, s{sXcc}, 8
  s_add_u32 s41, s41, s{sTk}
  v_mov_b32 v7, s41
  buffer_store_dwordx4 v[4:7], off, {WS}, s40
L_nprof:''')
a(f'''  s_cmp_eq_u32 s{sSig}, -1
  s_cbranch_scc1 L_nosig''')
if cfg['wbl2']: a('  buffer_wbl2 sc1\n  s_waitcnt vmcnt(0)')
a(f'''  s_add_u32 s40, s{sSig}, {FLG}
  v_mov_b32 v1, s40
  v_mov_b32 v2, 1
  buffer_atomic_add v2, v1, {WS}, 0 offen sc1
L_nosig:
  s_lshl_b32 s40, s{sQ}, 5
  s_add_u32 s40, s40, {DBG_QUEUE}
  v_mov_b32 v1, s40
  v_mov_b32 v2, 1
  global_atomic_add v3, v1, v2, s[{sDbg}:{sDbg+1}] sc0 sc1
  s_waitcnt vmcnt(0)
  v_mov_b32 v1, {LDS_TK}
  ds_write_b32 v1, v3 offset:16
  s_waitcnt lgkmcnt(0)
  s_mov_b64 exec, -1
L_next_w:
  s_barrier
  v_mov_b32 v1, {LDS_TK}
  ds_read_b32 v3, v1 offset:16
  s_waitcnt lgkmcnt(0)
  v_readfirstlane_b32 s{sTkt}, v3''')
if cfg['prof']: a('  s_memrealtime s[80:81]\n  s_waitcnt lgkmcnt(0)')
ranges = []
ranges.append((32, 'KV0')); ranges.append((28, 'GU0')); ranges.append((4, 'WOF')); ranges.append((4, 'D0'))
ranges.append((28, 'GU4')); ranges.append((4, 'D4')); ranges.append((32, 'KV4')); ranges.append((32, 'Q'))
ranges.append((31*8, 'AW')); ranges.append((4, 'A31')); ranges.append((16, 'W31'))
start = 0
for cnt, lab in ranges:
    a(f'''  s_sub_u32 s{sIdx}, s{sTkt}, {start}
  s_cmp_lt_u32 s{sTkt}, {start + cnt}
  s_cbranch_scc1 T_{lab}''')
    start += cnt
a('  s_branch L_end')
print('tasks per queue', start)
def mark():
    if cfg['prof']: a('  s_memrealtime s[84:85]\n  s_memtime s[86:87]\n  s_memtime s[88:89]\n  s_waitcnt lgkmcnt(0)')
def mark2():
    if cfg['prof']: a('  s_memtime s[88:89]\n  s_waitcnt lgkmcnt(0)')
a(f'''T_KV0:
  s_and_b32 s{T.sM}, s{sIdx}, 3
  s_lshr_b32 s40, s{sIdx}, 2
  s_branch T_KV
T_KV4:
  s_lshr_b32 s{T.sM}, s{sIdx}, 3
  s_add_u32 s{T.sM}, s{T.sM}, 4
  s_and_b32 s40, s{sIdx}, 7
T_KV:
  s_and_b32 s41, s40, 3
  s_lshl_b32 s{T.sN}, s{sQ}, 2
  s_add_u32 s{T.sN}, s{T.sN}, s41
  s_lshl_b32 s{sSig}, s{T.sM}, 7
  s_add_u32 s{sSig}, s{sSig}, {F_KV}
  s_cmp_ge_u32 s40, 4
  s_cbranch_scc1 T_V''')
emit_gemm_params(a, TY_K)
a(f'  s_mov_b32 s{sBase}, {K}\n  s_mov_b32 s{T.sTy}, 0\n  s_branch G_n')
a(f'''T_Q:
  s_lshr_b32 s{T.sM}, s{sIdx}, 2
  s_and_b32 s41, s{sIdx}, 3
  s_lshl_b32 s{T.sN}, s{sQ}, 2
  s_add_u32 s{T.sN}, s{T.sN}, s41
  s_lshl_b32 s{sSig}, s{T.sM}, 7
  s_add_u32 s{sSig}, s{sSig}, {F_Q}''')
emit_gemm_params(a, TY_Q)
a(f'  s_mov_b32 s{sBase}, {Q}\n  s_mov_b32 s{T.sTy}, 0\n  s_branch G_n')
a(f'''T_GU0:
  s_and_b32 s{T.sM}, s{sIdx}, 3
  s_branch T_GU
T_GU4:
  s_and_b32 s{T.sM}, s{sIdx}, 3
  s_add_u32 s{T.sM}, s{T.sM}, 4
T_GU:
  s_lshr_b32 s41, s{sIdx}, 2
  s_mul_i32 s{T.sN}, s{sQ}, 7
  s_add_u32 s{T.sN}, s{T.sN}, s41
  s_lshl_b32 s{sSig}, s{T.sM}, 7
  s_add_u32 s{sSig}, s{sSig}, {F_GU}''')
emit_gemm_params(a, TY_GU)
a(f'  s_mov_b32 s{T.sTy}, 2\n  s_branch G_n')
a(f'''T_D0:
  s_mov_b32 s{T.sM}, s{sIdx}
  s_branch T_D
T_D4:
  s_add_u32 s{T.sM}, s{sIdx}, 4
T_D:
  s_mov_b32 s{T.sN}, s{sQ}
  s_lshl_b32 s{sSig}, s{T.sM}, 7
  s_add_u32 s{sSig}, s{sSig}, {F_D}''')
wait_flag(F_GU, T.sM, 28)
a('  s_barrier')
emit_gemm_params(a, TY_D)
a(f'  s_mov_b32 s{T.sTy}, 3')
a('G_n:'); mark()
emit_gemm_main(a, False, 'G_n'); mark2()
a(f'''  s_cmp_eq_u32 s{T.sTy}, 2
  s_cbranch_scc1 G_egu
  s_cmp_eq_u32 s{T.sTy}, 3
  s_cbranch_scc1 G_ed''')
emit_epi_kq(a, f's{sBase}', SC); a('  s_branch L_next')
a('G_egu:'); emit_epi_gu(a, SC); a('  s_branch L_next')
a('G_ed:'); emit_epi_d(a, SC); a('  s_branch L_next')
a('T_V:'); emit_gemm_params(a, TY_V); mark(); emit_gemm_main(a, True, 'G_s'); mark2(); emit_epi_v(a, SC); a('  s_branch L_next')
a(f'''T_WOF:
  s_mov_b32 s{sSig}, {F_WOF}
  s_lshl_b32 s{T.sM}, s{sQ}, 5
  s_lshl_b32 s40, s{sIdx}, 3
  s_add_u32 s{T.sM}, s{T.sM}, s40
  s_add_u32 s{T.sN}, s{T.sM}, 8''')
mark()
a('T_WOF_l:')
emit_wo_repack(a, T.sM, SC)
a(f'''  s_add_u32 s{T.sM}, s{T.sM}, 1
  s_cmp_lt_u32 s{T.sM}, s{T.sN}
  s_cbranch_scc1 T_WOF_l
  s_branch L_next''')
a(f'''T_AW:
  s_lshr_b32 s{T.sM}, s{sIdx}, 3        ; block c
  s_and_b32 s40, s{sIdx}, 7
  s_cmp_ge_u32 s40, 4
  s_cbranch_scc1 T_W
  s_branch T_A
T_A31:
  s_mov_b32 s{T.sM}, 31
  s_mov_b32 s40, s{sIdx}
T_A:
  s_lshl_b32 s{sSig}, s{T.sM}, 7
  s_add_u32 s{sSig}, s{sSig}, {F_O}
  s_lshr_b32 s{T.sN}, s40, 1
  s_lshl_b32 s41, s{sQ}, 1
  s_add_u32 s{T.sN}, s{T.sN}, s41
  s_lshl_b32 s{T.sM}, s{T.sM}, 1
  s_and_b32 s40, s40, 1
  s_add_u32 s{T.sM}, s{T.sM}, s40       ; segment
  s_lshr_b32 s{T.sTy}, s{T.sM}, 3''')
wait_flag(F_Q, T.sTy, 16)
a(f'  s_add_u32 s{T.sTy}, s{T.sM}, 1')
l = a.label('L_wp')
a(f'''  s_mov_b32 s41, {FLG + F_PROG}
  s_cmp_lg_u32 s{T.sW}, 0
  s_cbranch_scc1 {l}_w
  s_mov_b32 s{sBnd}, {BOUND}
{l}_p:
  buffer_load_dword v1, off, {WS}, s41 sc1
  s_waitcnt vmcnt(0)
  v_readfirstlane_b32 s42, v1
  s_nop 0
  s_cmp_ge_u32 s42, s{T.sTy}
  s_cbranch_scc1 {l}_w
  s_sub_u32 s{sBnd}, s{sBnd}, 1
  s_cbranch_scc0 {l}_p
  v_mov_b32 v1, {DBG_FAIL + 8}
  v_mov_b32 v2, 1
  s_mov_b64 exec, 1
  global_atomic_add v1, v2, s[{sDbg}:{sDbg+1}] sc1
  s_mov_b64 exec, -1
{l}_w:
  s_barrier''')
mark()
emit_attn(a, T.sM, T.sN, SC)
a('  s_branch L_next')
def wo_waits(sBlk):
    wait_flag(F_WOF, None, 16)
    a(f'  s_lshr_b32 s{T.sTy}, s{sBlk}, 2')
    wait_flag(F_D, T.sTy, 4)
    wait_flag(F_O, sBlk, 16)
    a('  s_barrier')
a(f'''T_W:
  s_mov_b32 s{sSig}, {F_CDONE + 128}
  s_and_b32 s40, s40, 3
  s_lshl_b32 s{T.sN}, s{sQ}, 2
  s_add_u32 s{T.sN}, s{T.sN}, s40
  s_lshl_b32 s{T.sN}, s{T.sN}, 2''')
wo_waits(T.sM)
a(f'  s_lshl_b32 s{T.sM}, s{T.sM}, 2')
mark()
emit_wo_gemm(a, T.sM, T.sN, 4, 4)
a('  s_branch L_next')
a(f'''T_W31:
  s_mov_b32 s{sSig}, {F_CDONE + 128}
  s_mov_b32 s{T.sM}, 31''')
wo_waits(T.sM)
a(f'''  s_lshr_b32 s40, s{sIdx}, 3
  s_lshl_b32 s40, s40, 1
  s_add_u32 s{T.sM}, s40, 124
  s_and_b32 s40, s{sIdx}, 7
  s_lshl_b32 s{T.sN}, s{sQ}, 3
  s_add_u32 s{T.sN}, s{T.sN}, s40
  s_lshl_b32 s{T.sN}, s{T.sN}, 1''')
mark()
emit_wo_gemm(a, T.sM, T.sN, 2, 2, depth=8)
a('  s_branch L_next')
a(f'''L_fail:
  v_mov_b32 v1, {DBG_FAIL}
  v_mov_b32 v2, 1
  s_mov_b64 exec, 1
  global_atomic_add v1, v2, s[{sDbg}:{sDbg+1}] sc1
  s_waitcnt vmcnt(0)
L_end:
  s_endpgm''')
a(kernel_desc(NAME, 512, accum=256))
open(out, 'w').write(a.text())
check_local(out, NAME)
```

```python
MB = 1 << 20
WS_BYTES = 256*MB
XN = 0
G  = 4*MB
Q  = 8*MB
K  = 24*MB
VT = 40*MB
O  = 56*MB
H  = 72*MB
KM = 88*MB
VM = 92*MB
RING = 96*MB
WOF = 104*MB
FLG = 112*MB
R = 4
RC = 0
RB = 2*MB
RA = 3*MB
RING_BYTES = RA + R*65536
F_KV = 0*128
F_Q = 8*128
F_GU = 16*128
F_D = 24*128
F_WOF = 32*128
F_PROG = 33*128
F_CDONE = 34*128
F_HEAD = 72*128
F_O = 40*128
FLG_BYTES = 256*64
A_X, A_MEM0, A_WQ, A_WK, A_WV, A_WO, A_SEG, B_X, B_WG, B_WU, B_WD, D_OUT, D_DBG, D_WS = [8*i for i in range(14)]
DBG_XCD = 192
DBG_GT = 224
DBG_ARR = 228
DBG_FAIL = 232
DBG_PAR = 244
DBG_QUEUE = 64
```

```python
import sys
from tasks import *
from chain import *
import chain
NAME = 'recurrent_scan__memory_aug_recurrent_mem_tr__glu_gated_reglu__prompt_kernel'
cfg = dict(dbgt=0, par=1, prof=0, wbl2=0, stamp=-1, force=0, chainonly=0, nochain=0)
cfg.update(chain.OPT)
out = sys.argv[1]
for x in sys.argv[2:]:
    k, v = x.split('='); cfg[k] = int(v)
for k in chain.OPT: chain.OPT[k] = cfg[k]
SC = ' sc1'
HDR = open('recurrent_scan__memory_aug_recurrent_mem_tr__glu_gated_reglu__prompt.s.ref').read().split('\n')
a = Asm(); c = C
for l in HDR[:15]: a(l)
LDS_TK = 131072
a(f'; @launch grid=(256,1,1) block=(256,1,1) lds={LDS_TK + 256}')
a('.amdgcn_target "amdgcn-amd-amdhsa--gfx950"')
a(kernel_head(NAME))
sDbg = 90; sXcc = 92; sTk = 93; sGt = 94; sMode = 95; sQ = 96; sTkt = 97; sIdx = 98; sBnd = 99
sStamp = 100
WS = f's[{T.sWS}:{T.sWS+3}]'
BOUND = 100000
def dstamp(word, v=1, neg=False, cond=None):
    if not cfg['dbgt']: return
    l = a.label('L_ds')
    a(cond if cond else f'  s_cmp_eq_u32 s{T.sW if v < 100 else c.sW}, 0')
    a(f"""  s_cbranch_scc0 {l}
  s_memrealtime s[100:101]
  s_waitcnt lgkmcnt(0)""")
    if neg: a('  s_not_b32 s100, s100')
    a(f"""  v_mov_b32 v{v}, {4*word}
  v_mov_b32 v{v+1}, s100
  s_mov_b64 exec, 1
  global_atomic_umax v{v}, v{v+1}, s[{sDbg}:{sDbg+1}] sc1
  s_mov_b64 exec, -1
{l}:""")
a(f'''  s_cmp_ge_u32 s2, 256
  s_cbranch_scc1 L_end
  s_load_dwordx2 s[{sDbg}:{sDbg+1}], s[0:1], {D_DBG}
  v_lshrrev_b32 v1, 6, v0
  v_and_b32 v0, 63, v0
  s_getreg_b32 s{sXcc}, hwreg(HW_REG_XCC_ID)
  v_readfirstlane_b32 s{T.sW}, v1
  s_and_b32 s{sXcc}, s{sXcc}, 7
  s_mov_b32 s{c.sW}, s{T.sW}''')
emit_ws_srd(a)
if cfg['prof']:
    a(f'  s_memrealtime s[{sStamp}:{sStamp+1}]')
dstamp(0, 1, neg=True); dstamp(1, 1)
a(f'''  s_cmp_lg_u32 s{T.sW}, 0
  s_cbranch_scc1 L_tk_w
  s_lshl_b32 s40, s{sXcc}, 2
  s_add_u32 s40, s40, {DBG_XCD}
  v_mov_b32 v250, s40
  v_mov_b32 v251, 1
  v_mov_b32 v252, {DBG_GT}
  s_mov_b64 exec, 1
  global_atomic_add v248, v250, v251, s[{sDbg}:{sDbg+1}] sc0 sc1
  global_atomic_add v249, v252, v251, s[{sDbg}:{sDbg+1}] sc0 sc1
  s_mov_b64 exec, -1
L_tk_w:''')
emit_ln(a, 2, SC)
emit_ring_init(a, 2, SC)
a(f'''  s_cmp_lg_u32 s{T.sW}, 0
  s_cbranch_scc1 L_fl_w
  s_lshl_b32 s40, s2, 6
  s_add_u32 s40, s40, {FLG}
  v_lshlrev_b32 v1, 2, v0
  v_mov_b32 v2, 0
  s_mov_b32 exec_lo, 0xffff
  s_mov_b32 exec_hi, 0
  buffer_store_dword v2, v1, {WS}, s40 offen sc1
  s_mov_b64 exec, 1
  s_waitcnt vmcnt(0)
  v_mov_b32 v1, {LDS_TK}
  ds_write_b64 v1, v[248:249]
  s_waitcnt lgkmcnt(0)
  s_mov_b64 exec, -1
L_fl_w:
  s_waitcnt vmcnt(0)
  s_barrier
  s_cmp_lg_u32 s{T.sW}, 0
  s_cbranch_scc1 L_ar_w
  v_mov_b32 v4, {DBG_ARR}
  v_mov_b32 v2, 1
  s_mov_b64 exec, 1
  global_atomic_add v4, v2, s[{sDbg}:{sDbg+1}] sc1
  s_mov_b64 exec, -1
L_ar_w:
  v_mov_b32 v1, {LDS_TK}
  ds_read_b64 v[2:3], v1
  s_waitcnt lgkmcnt(0)
  v_readfirstlane_b32 s{sTk}, v2
  v_readfirstlane_b32 s{sGt}, v3
  s_mov_b32 s{sMode}, 0
  s_cmp_ge_u32 s{sXcc}, 4
  s_cbranch_scc1 L_wait
  s_cmp_ge_u32 s{sTk}, 32
  s_cbranch_scc1 L_wait
  s_mov_b32 s{c.sX}, s{sXcc}
  s_mov_b32 s{c.sJ}, s{sTk}
L_setup:
  s_load_dwordx4 s[64:67], s[0:1], {A_MEM0}
  s_load_dwordx4 s[68:71], s[0:1], {A_WK}
  s_load_dwordx2 s[72:73], s[0:1], {A_WO}
  s_mov_b32 s{c.sPar}, {cfg['par']}
  s_waitcnt lgkmcnt(0)''')
emit_ring_base(a, 50, 52)
srd(a, c.sRG, 's50', 's51', 4*MB)
srd(a, c.sT0, 's66', 's67', 8*MB); srd(a, c.sT0+4, 's68', 's69', 8*MB)
srd(a, c.sT0+8, 's70', 's71', 8*MB); srd(a, c.sT0+12, 's72', 's73', 8*MB)
srd(a, 76, 's64', 's65', 16384)
emit_setup(a)
emit_weights(a)
def emit_wait_all(p, cand):
    a(f'''{p}:
  s_cmp_lg_u32 s{c.sW}, 0
  s_cbranch_scc1 {p}_w
  v_mov_b32 v17, {DBG_ARR}
  s_mov_b32 s{sBnd}, {4*BOUND}
{p}_p:
  global_load_dword v18, v17, s[{sDbg}:{sDbg+1}] sc1
  s_waitcnt vmcnt(0)
  v_readfirstlane_b32 s40, v18
  s_nop 0
  s_cmp_ge_u32 s40, 256
  s_cbranch_scc1 {p}_ok
  s_sub_u32 s{sBnd}, s{sBnd}, 1
  s_cbranch_scc0 {p}_p
  v_mov_b32 v18, -1
  s_branch {p}_pub
{p}_ok:
  v_mov_b32 v16, {DBG_XCD}
  global_load_dwordx4 v[20:23], v16, s[{sDbg}:{sDbg+1}] sc1
  global_load_dwordx4 v[24:27], v16, s[{sDbg}:{sDbg+1}] offset:16 sc1
  s_waitcnt vmcnt(0)
  v_min_u32 v20, v20, v21
  v_min_u32 v22, v22, v23
  v_min_u32 v24, v24, v25
  v_min_u32 v26, v26, v27
  v_min_u32 v20, v20, v22
  v_min_u32 v24, v24, v26
  v_min_u32 v18, v20, v24
{p}_pub:
  v_mov_b32 v16, {LDS_TK}
  ds_write_b32 v16, v18 offset:8
  s_waitcnt lgkmcnt(0)
{p}_w:
  s_barrier
  v_mov_b32 v16, {LDS_TK}
  ds_read_b32 v17, v16 offset:8
  s_waitcnt lgkmcnt(0)
  v_readfirstlane_b32 s40, v17
  s_nop 0
  s_cmp_eq_u32 s40, -1
  s_cbranch_scc1 L_fail
  s_cmp_ge_u32 s40, {32 if not cfg['force'] else 33}
  s_cbranch_scc0 L_glob''')
    dstamp(2, 160)
    if cand: a('  s_branch L_chain_l')
    else:
        a(f'''  s_sub_u32 s{sQ}, s{sXcc}, 4
  s_and_b32 s{sQ}, s{sQ}, 3
  s_branch L_tasks''')
a(f'''  s_cmp_eq_u32 s{sMode}, 2
  s_cbranch_scc1 L_chain_g''')
emit_wait_all('L_waitc', True)
emit_wait_all('L_wait', False)
a(f'''L_glob:
  s_cmp_ge_u32 s{sGt}, 128
  s_cbranch_scc1 L_glob_t
  s_lshr_b32 s{c.sX}, s{sGt}, 5
  s_and_b32 s{c.sJ}, s{sGt}, 31
  s_mov_b32 s{sMode}, 2
  s_branch L_setup
L_glob_t:
  s_sub_u32 s{sQ}, s{sGt}, 128
  s_lshr_b32 s{sQ}, s{sQ}, 5
  s_and_b32 s{sQ}, s{sQ}, 3
  s_branch L_tasks''')

sPub = 48; sFo = 49
def after_a(a, pfx):
    if cfg['dbgt']:
        for wd, stp in ((4, 8), (5, 32)):
            l = a.label('L_cs')
            a(f'  s_cmp_eq_u32 s{c.sS}, {stp}\n  s_cbranch_scc0 {l}')
            dstamp(wd, 160, cond=f'  s_cmp_lg_u32 s{sPub}, 0')
            a(f'{l}:')
    a(f'''  s_cmp_eq_u32 s{sPub}, 0
  s_cbranch_scc1 {pfx}_npub
  s_sub_u32 s{c.sT}, s{c.sS}, 1
  s_max_i32 s{c.sT}, s{c.sT}, 0
  v_mov_b32 v254, s{c.sT}
  s_mov_b32 s{sFo}, {FLG + F_PROG}
  buffer_store_dword v254, off, s[{c.sWS}:{c.sWS+3}], s{sFo} sc1
{pfx}_npub:
  s_cmp_lg_u32 s{c.sW}, 3
  s_cbranch_scc1 {pfx}_nkv
  s_and_b32 s{c.sT}, s{c.sS}, 7
  s_cmp_lg_u32 s{c.sT}, 5
  s_cbranch_scc1 {pfx}_nkv
  s_add_u32 s{c.sT}, s{c.sS}, 3
  s_lshr_b32 s{c.sT}, s{c.sT}, 3
  s_min_u32 s{c.sT}, s{c.sT}, 7
  s_lshl_b32 s{c.sT}, s{c.sT}, 7
  s_add_u32 s{sFo}, s{c.sT}, {FLG + F_KV}
  buffer_load_dword v253, off, s[{c.sWS}:{c.sWS+3}], s{sFo} sc1
{pfx}_nkv:''')
def pre_red1(a, pfx, fail):
    nk = 0 if cfg['nokv'] else 8
    a(f'''  s_cmp_lg_u32 s{c.sW}, 3
  s_cbranch_scc1 {pfx}_kvok
  s_and_b32 s{c.sT}, s{c.sS}, 7
  s_cmp_lg_u32 s{c.sT}, 5
  s_cbranch_scc1 {pfx}_kvok
  s_waitcnt vmcnt({nk})
  s_mov_b32 s{c.sBound}, {BOUND}
{pfx}_kvp:
  v_readfirstlane_b32 s{c.sT}, v253
  s_nop 0
  s_cmp_ge_u32 s{c.sT}, 32
  s_cbranch_scc1 {pfx}_kvok
  buffer_load_dword v253, off, s[{c.sWS}:{c.sWS+3}], s{sFo} sc1
  s_waitcnt vmcnt(0)
  s_sub_u32 s{c.sBound}, s{c.sBound}, 1
  s_cbranch_scc0 {pfx}_kvp
  s_branch {fail}
{pfx}_kvok:''')
if not cfg['chainonly']:
    chain.HOOK['after_a'] = after_a; chain.HOOK['pre_red1'] = pre_red1
def stamp(a, k):
    l = a.label('L_st')
    a(f'  s_cmp_eq_u32 s{c.sS}, {cfg["stamp"]}\n  s_cbranch_scc0 {l}\n  s_memtime s[{64+2*k}:{65+2*k}]\n{l}:')
stf = stamp if cfg['stamp'] >= 0 else None
def chain_entry(mode, pfx):
    a(f'''  s_mov_b32 s{sPub}, 0
  s_add_u32 s50, s{c.sX}, s{c.sJ}
  s_cmp_lg_u32 s50, 0
  s_cbranch_scc1 {pfx}_np
  s_cmp_eq_u32 s{c.sW}, 2
  s_cselect_b32 s{sPub}, 1, 0
{pfx}_np:''')
    if not cfg['chainonly']:
        a(f'''  s_mov_b32 s{sFo}, {FLG + F_KV}
  s_mov_b32 s{c.sBound}, {BOUND}
{pfx}_kv0:
  buffer_load_dword v253, off, s[{c.sWS}:{c.sWS+3}], s{sFo} sc1
  s_waitcnt vmcnt(0)
  v_readfirstlane_b32 s50, v253
  s_nop 0
  s_cmp_ge_u32 s50, 32
  s_cbranch_scc1 {pfx}_kv0ok
  s_sub_u32 s{c.sBound}, s{c.sBound}, 1
  s_cbranch_scc0 {pfx}_kv0
  s_branch L_fail
{pfx}_kv0ok:''')
    if cfg['prof']:
        a('  s_memrealtime s[80:81]\n  s_memtime s[84:85]\n  s_waitcnt lgkmcnt(0)')
    dstamp(3, 160)
    emit_start(a, mode, 76)
    emit_loop(a, mode, pfx, 'L_fail', 'L_chain_done', stamp=stf)
a('L_chain_l:')
if cfg['nochain']:
    a(f'''  s_mov_b32 s50, {FLG + F_PROG}
  v_mov_b32 v16, 64
  buffer_store_dword v16, off, s[4:7], s50 sc1
  s_waitcnt vmcnt(0)
  s_branch L_end''')
chain_entry('L', 'LL')
a('L_chain_g:')
chain_entry('G', 'LG')
a(f'''L_chain_done:
  s_waitcnt vmcnt(0)
  s_barrier''')
dstamp(6, 160)
if cfg['prof']:
    a(f'''  s_memrealtime s[82:83]
  s_memtime s[86:87]
  s_waitcnt lgkmcnt(0)
  s_lshl_b32 s50, s{c.sX}, 5
  s_add_u32 s50, s50, s{c.sJ}
  s_lshl_b32 s50, s50, 2
  s_add_u32 s50, s50, s{c.sW}
  s_lshl_b32 s50, s50, 6
  s_add_u32 s50, s50, {200*MB}
  v_mov_b32 v1, s50
  s_sub_u32 s86, s86, s84''')
    for k in range(8): a(f'  v_mov_b32 v{2+k}, s{64+2*k}')
    a(f'''  v_mov_b32 v10, s86
  v_mov_b32 v11, s{sStamp}
  v_mov_b32 v12, s80
  v_mov_b32 v13, s82
  s_mov_b64 exec, 1
  buffer_store_dwordx4 v[2:5], v1, s[{c.sWS}:{c.sWS+3}], 0 offen
  buffer_store_dwordx4 v[6:9], v1, s[{c.sWS}:{c.sWS+3}], 0 offen offset:16
  buffer_store_dwordx4 v[10:13], v1, s[{c.sWS}:{c.sWS+3}], 0 offen offset:32
  s_mov_b64 exec, -1''')
a(f'''  s_cmp_lg_u32 s{c.sW}, 0
  s_cbranch_scc1 L_end
  s_mov_b32 s40, {FLG + F_CDONE}
  v_mov_b32 v1, s40
  v_mov_b32 v2, 1
  s_mov_b64 exec, 1
  buffer_atomic_add v2, v1, s[{c.sWS}:{c.sWS+3}], 0 offen sc0 sc1
  s_waitcnt vmcnt(0)
  v_readfirstlane_b32 s40, v2
  s_nop 0
  s_cmp_eq_u32 s40, 127
  s_cbranch_scc0 L_end
  s_mov_b32 s40, {FLG + F_PROG}
  v_mov_b32 v2, 64
  buffer_store_dword v2, off, s[{c.sWS}:{c.sWS+3}], s40 sc1
  s_waitcnt vmcnt(0)
  s_branch L_end''')

def wait_flag(off_const, sreg_idx, target, shift=7):
    l = a.label('L_wf')
    if sreg_idx is None: a(f'  s_mov_b32 s41, {FLG + off_const}')
    else: a(f'  s_lshl_b32 s41, s{sreg_idx}, {shift}\n  s_add_u32 s41, s41, {FLG + off_const}')
    a(f'''  s_cmp_lg_u32 s{T.sW}, 0
  s_cbranch_scc1 {l}_w
  s_mov_b32 s{sBnd}, {BOUND}
{l}_p:
  buffer_load_dword v1, off, {WS}, s41 sc1
  s_waitcnt vmcnt(0)
  v_readfirstlane_b32 s42, v1
  s_nop 0
  s_cmp_ge_u32 s42, {target}
  s_cbranch_scc1 {l}_w
  s_sub_u32 s{sBnd}, s{sBnd}, 1
  s_cbranch_scc0 {l}_p
  v_mov_b32 v1, {DBG_FAIL + 4}
  v_mov_b32 v2, 1
  s_mov_b64 exec, 1
  global_atomic_add v1, v2, s[{sDbg}:{sDbg+1}] sc1
  s_mov_b64 exec, -1
{l}_w:''')
sSig = 35
sBase = 32
a('L_tasks:')
a(f'  s_mov_b32 s{T.sW}, s{c.sW}')
a(f'  s_mov_b32 s{sSig}, -1')
if cfg['dbgt']: a('  s_mov_b32 s70, 15')
a('L_next:')
a(f'''  s_waitcnt vmcnt(0)
  s_barrier
  s_cmp_lg_u32 s{T.sW}, 0
  s_cbranch_scc1 L_next_w
  s_mov_b64 exec, 1''')
if cfg['prof']:
    a(f'''  s_cmp_eq_u32 s{sSig}, -1
  s_cbranch_scc1 L_nprof
  s_memrealtime s[82:83]
  s_memtime s[74:75]
  s_lshl_b32 s40, s{sQ}, 9
  s_add_u32 s40, s40, s{sTkt}
  s_lshl_b32 s40, s40, 5
  s_add_u32 s40, s40, {201*MB}
  s_waitcnt lgkmcnt(0)
  s_sub_u32 s41, s88, s86
  v_mov_b32 v8, s41
  s_sub_u32 s41, s74, s88
  v_mov_b32 v9, s41
  s_sub_u32 s41, s74, s86
  v_mov_b32 v10, s41
  v_mov_b32 v11, 0
  s_add_u32 s41, s40, 16
  buffer_store_dwordx4 v[8:11], off, {WS}, s41
  v_mov_b32 v4, s80
  v_mov_b32 v5, s84
  v_mov_b32 v6, s82
  s_lshl_b32 s41, s{sXcc}, 8
  s_add_u32 s41, s41, s{sTk}
  v_mov_b32 v7, s41
  buffer_store_dwordx4 v[4:7], off, {WS}, s40
L_nprof:''')
if cfg['dbgt']:
    a(f'''  s_memrealtime s[100:101]
  s_waitcnt lgkmcnt(0)
  s_lshl_b32 s40, s70, 2
  v_mov_b32 v1, s40
  v_mov_b32 v2, s100
  global_atomic_umax v1, v2, s[{sDbg}:{sDbg+1}] sc1''')
a(f'''  s_cmp_eq_u32 s{sSig}, -1
  s_cbranch_scc1 L_nosig''')
if cfg['wbl2']: a('  buffer_wbl2 sc1\n  s_waitcnt vmcnt(0)')
a(f'''  s_add_u32 s40, s{sSig}, {FLG}
  v_mov_b32 v1, s40
  v_mov_b32 v2, 1
  buffer_atomic_add v2, v1, {WS}, 0 offen sc1
L_nosig:
  s_lshl_b32 s40, s{sQ}, 5
  s_add_u32 s40, s40, {DBG_QUEUE}
  v_mov_b32 v1, s40
  v_mov_b32 v2, 1
  global_atomic_add v3, v1, v2, s[{sDbg}:{sDbg+1}] sc0 sc1
  s_waitcnt vmcnt(0)
  v_mov_b32 v1, {LDS_TK}
  ds_write_b32 v1, v3 offset:16
  s_waitcnt lgkmcnt(0)
  s_mov_b64 exec, -1
L_next_w:
  s_barrier
  v_mov_b32 v1, {LDS_TK}
  ds_read_b32 v3, v1 offset:16
  s_waitcnt lgkmcnt(0)
  v_readfirstlane_b32 s{sTkt}, v3''')
if cfg['prof']: a('  s_memrealtime s[80:81]\n  s_waitcnt lgkmcnt(0)')
ranges = []
ranges.append((32, 'KV0')); ranges.append((28, 'GU0')); ranges.append((4, 'WOF')); ranges.append((4, 'D0'))
ranges.append((28, 'GU4')); ranges.append((4, 'D4')); ranges.append((32, 'KV4')); ranges.append((32, 'Q'))
ranges.append((31*8, 'AW')); ranges.append((4, 'A31')); ranges.append((16, 'W31'))
start = 0
DW = dict(KV0=8, GU0=9, WOF=9, D0=10, GU4=11, D4=12, KV4=13, Q=14, AW=7, A31=7, W31=7)
for cnt, lab in ranges:
    if cfg['dbgt']: a(f'  s_mov_b32 s70, {DW[lab]}')
    a(f'''  s_sub_u32 s{sIdx}, s{sTkt}, {start}
  s_cmp_lt_u32 s{sTkt}, {start + cnt}
  s_cbranch_scc1 T_{lab}''')
    start += cnt
a('  s_branch L_end')
print('tasks per queue', start)
def mark():
    if cfg['prof']: a('  s_memrealtime s[84:85]\n  s_memtime s[86:87]\n  s_memtime s[88:89]\n  s_waitcnt lgkmcnt(0)')
def mark2():
    if cfg['prof']: a('  s_memtime s[88:89]\n  s_waitcnt lgkmcnt(0)')
a(f'''T_KV0:
  s_and_b32 s{T.sM}, s{sIdx}, 3
  s_lshr_b32 s40, s{sIdx}, 2
  s_branch T_KV
T_KV4:
  s_lshr_b32 s{T.sM}, s{sIdx}, 3
  s_add_u32 s{T.sM}, s{T.sM}, 4
  s_and_b32 s40, s{sIdx}, 7
T_KV:
  s_and_b32 s41, s40, 3
  s_lshl_b32 s{T.sN}, s{sQ}, 2
  s_add_u32 s{T.sN}, s{T.sN}, s41
  s_lshl_b32 s{sSig}, s{T.sM}, 7
  s_add_u32 s{sSig}, s{sSig}, {F_KV}
  s_cmp_ge_u32 s40, 4
  s_cbranch_scc1 T_V''')
emit_gemm_params(a, TY_K)
a(f'  s_mov_b32 s{sBase}, {K}\n  s_mov_b32 s{T.sTy}, 0\n  s_branch G_n')
a(f'''T_Q:
  s_lshr_b32 s{T.sM}, s{sIdx}, 2
  s_and_b32 s41, s{sIdx}, 3
  s_lshl_b32 s{T.sN}, s{sQ}, 2
  s_add_u32 s{T.sN}, s{T.sN}, s41
  s_lshl_b32 s{sSig}, s{T.sM}, 7
  s_add_u32 s{sSig}, s{sSig}, {F_Q}''')
emit_gemm_params(a, TY_Q)
a(f'  s_mov_b32 s{sBase}, {Q}\n  s_mov_b32 s{T.sTy}, 0\n  s_branch G_n')
a(f'''T_GU0:
  s_and_b32 s{T.sM}, s{sIdx}, 3
  s_branch T_GU
T_GU4:
  s_and_b32 s{T.sM}, s{sIdx}, 3
  s_add_u32 s{T.sM}, s{T.sM}, 4
T_GU:
  s_lshr_b32 s41, s{sIdx}, 2
  s_mul_i32 s{T.sN}, s{sQ}, 7
  s_add_u32 s{T.sN}, s{T.sN}, s41
  s_lshl_b32 s{sSig}, s{T.sM}, 7
  s_add_u32 s{sSig}, s{sSig}, {F_GU}''')
emit_gemm_params(a, TY_GU)
a(f'  s_mov_b32 s{T.sTy}, 2\n  s_branch G_n')
a(f'''T_D0:
  s_mov_b32 s{T.sM}, s{sIdx}
  s_branch T_D
T_D4:
  s_add_u32 s{T.sM}, s{sIdx}, 4
T_D:
  s_mov_b32 s{T.sN}, s{sQ}
  s_lshl_b32 s{sSig}, s{T.sM}, 7
  s_add_u32 s{sSig}, s{sSig}, {F_D}''')
wait_flag(F_GU, T.sM, 28)
a('  s_barrier')
emit_gemm_params(a, TY_D)
a(f'  s_mov_b32 s{T.sTy}, 3')
a('G_n:'); mark()
emit_gemm_main(a, False, 'G_n'); mark2()
a(f'''  s_cmp_eq_u32 s{T.sTy}, 2
  s_cbranch_scc1 G_egu
  s_cmp_eq_u32 s{T.sTy}, 3
  s_cbranch_scc1 G_ed''')
emit_epi_kq(a, f's{sBase}', SC); a('  s_branch L_next')
a('G_egu:'); emit_epi_gu(a, SC); a('  s_branch L_next')
a('G_ed:'); emit_epi_d(a, SC); a('  s_branch L_next')
a('T_V:'); emit_gemm_params(a, TY_V); mark(); emit_gemm_main(a, True, 'G_s'); mark2(); emit_epi_v(a, SC); a('  s_branch L_next')
a(f'''T_WOF:
  s_mov_b32 s{sSig}, {F_WOF}
  s_lshl_b32 s{T.sM}, s{sQ}, 5
  s_lshl_b32 s40, s{sIdx}, 3
  s_add_u32 s{T.sM}, s{T.sM}, s40
  s_add_u32 s{T.sN}, s{T.sM}, 8''')
mark()
a('T_WOF_l:')
emit_wo_repack(a, T.sM, SC)
a(f'''  s_add_u32 s{T.sM}, s{T.sM}, 1
  s_cmp_lt_u32 s{T.sM}, s{T.sN}
  s_cbranch_scc1 T_WOF_l
  s_branch L_next''')
a(f'''T_AW:
  s_lshr_b32 s{T.sM}, s{sIdx}, 3        ; block c
  s_and_b32 s40, s{sIdx}, 7
  s_cmp_ge_u32 s40, 4
  s_cbranch_scc1 T_W
  s_branch T_A
T_A31:
  s_mov_b32 s{T.sM}, 31
  s_mov_b32 s40, s{sIdx}
T_A:
  s_lshl_b32 s{sSig}, s{T.sM}, 7
  s_add_u32 s{sSig}, s{sSig}, {F_O}
  s_lshr_b32 s{T.sN}, s40, 1
  s_lshl_b32 s41, s{sQ}, 1
  s_add_u32 s{T.sN}, s{T.sN}, s41
  s_lshl_b32 s{T.sM}, s{T.sM}, 1
  s_and_b32 s40, s40, 1
  s_add_u32 s{T.sM}, s{T.sM}, s40       ; segment
  s_lshr_b32 s{T.sTy}, s{T.sM}, 3''')
wait_flag(F_Q, T.sTy, 16)
a(f'  s_add_u32 s{T.sTy}, s{T.sM}, 1')
l = a.label('L_wp')
a(f'''  s_mov_b32 s41, {FLG + F_PROG}
  s_cmp_lg_u32 s{T.sW}, 0
  s_cbranch_scc1 {l}_w
  s_mov_b32 s{sBnd}, {BOUND}
{l}_p:
  buffer_load_dword v1, off, {WS}, s41 sc1
  s_waitcnt vmcnt(0)
  v_readfirstlane_b32 s42, v1
  s_nop 0
  s_cmp_ge_u32 s42, s{T.sTy}
  s_cbranch_scc1 {l}_w
  s_sub_u32 s{sBnd}, s{sBnd}, 1
  s_cbranch_scc0 {l}_p
  v_mov_b32 v1, {DBG_FAIL + 8}
  v_mov_b32 v2, 1
  s_mov_b64 exec, 1
  global_atomic_add v1, v2, s[{sDbg}:{sDbg+1}] sc1
  s_mov_b64 exec, -1
{l}_w:
  s_barrier''')
mark()
emit_attn(a, T.sM, T.sN, SC)
a('  s_branch L_next')
def wo_waits(sBlk):
    wait_flag(F_WOF, None, 16)
    a(f'  s_lshr_b32 s{T.sTy}, s{sBlk}, 2')
    wait_flag(F_D, T.sTy, 4)
    wait_flag(F_O, sBlk, 16)
    a('  s_barrier')
a(f'''T_W:
  s_mov_b32 s{sSig}, {F_CDONE + 128}
  s_and_b32 s40, s40, 3
  s_lshl_b32 s{T.sN}, s{sQ}, 2
  s_add_u32 s{T.sN}, s{T.sN}, s40
  s_lshl_b32 s{T.sN}, s{T.sN}, 2''')
wo_waits(T.sM)
a(f'  s_lshl_b32 s{T.sM}, s{T.sM}, 2')
mark()
emit_wo_gemm(a, T.sM, T.sN, 4, 4)
a('  s_branch L_next')
a(f'''T_W31:
  s_mov_b32 s{sSig}, {F_CDONE + 128}
  s_mov_b32 s{T.sM}, 31''')
wo_waits(T.sM)
a(f'''  s_lshr_b32 s40, s{sIdx}, 3
  s_lshl_b32 s40, s40, 1
  s_add_u32 s{T.sM}, s40, 124
  s_and_b32 s40, s{sIdx}, 7
  s_lshl_b32 s{T.sN}, s{sQ}, 3
  s_add_u32 s{T.sN}, s{T.sN}, s40
  s_lshl_b32 s{T.sN}, s{T.sN}, 1''')
mark()
emit_wo_gemm(a, T.sM, T.sN, 2, 2, depth=8)
a('  s_branch L_next')
a(f'''L_fail:
  v_mov_b32 v1, {DBG_FAIL}
  v_mov_b32 v2, 1
  s_mov_b64 exec, 1
  global_atomic_add v1, v2, s[{sDbg}:{sDbg+1}] sc1
  s_waitcnt vmcnt(0)
L_end:
  s_endpgm''')
a(kernel_desc(NAME, 512, accum=256))
open(out, 'w').write(a.text())
check_local(out, NAME)
```

```python
import sys
from tasks import *
from chain import *
import chain
NAME = 'recurrent_scan__memory_aug_recurrent_mem_tr__glu_gated_reglu__prompt_kernel'
cfg = dict(dbgt=0, par=1, prof=0, wbl2=0, stamp=-1, force=0, chainonly=0, nochain=0)
cfg.update(chain.OPT)
out = sys.argv[1]
for x in sys.argv[2:]:
    k, v = x.split('='); cfg[k] = int(v)
for k in chain.OPT: chain.OPT[k] = cfg[k]
SC = ' sc1'
HDR = open('recurrent_scan__memory_aug_recurrent_mem_tr__glu_gated_reglu__prompt.s.ref').read().split('\n')
a = Asm(); c = C
for l in HDR[:15]: a(l)
LDS_TK = 131072
a(f'; @launch grid=(256,1,1) block=(256,1,1) lds={LDS_TK + 256}')
a('.amdgcn_target "amdgcn-amd-amdhsa--gfx950"')
a(kernel_head(NAME))
sDbg = 90; sXcc = 92; sTk = 93; sGt = 94; sMode = 95; sQ = 96; sTkt = 97; sIdx = 98; sBnd = 99
sStamp = 100
WS = f's[{T.sWS}:{T.sWS+3}]'
BOUND = 100000
def dstamp(word, v=1, neg=False, cond=None):
    if not cfg['dbgt']: return
    l = a.label('L_ds')
    a(cond if cond else f'  s_cmp_eq_u32 s{T.sW if v < 100 else c.sW}, 0')
    a(f"""  s_cbranch_scc0 {l}
  s_memrealtime s[100:101]
  s_waitcnt lgkmcnt(0)""")
    if neg: a('  s_not_b32 s100, s100')
    a(f"""  v_mov_b32 v{v}, {4*word}
  v_mov_b32 v{v+1}, s100
  s_mov_b64 exec, 1
  global_atomic_umax v{v}, v{v+1}, s[{sDbg}:{sDbg+1}] sc1
  s_mov_b64 exec, -1
{l}:""")
a(f'''  s_cmp_ge_u32 s2, 256
  s_cbranch_scc1 L_end
  s_load_dwordx2 s[{sDbg}:{sDbg+1}], s[0:1], {D_DBG}
  v_lshrrev_b32 v1, 6, v0
  v_and_b32 v0, 63, v0
  s_getreg_b32 s{sXcc}, hwreg(HW_REG_XCC_ID)
  v_readfirstlane_b32 s{T.sW}, v1
  s_and_b32 s{sXcc}, s{sXcc}, 7
  s_mov_b32 s{c.sW}, s{T.sW}''')
emit_ws_srd(a)
if cfg['prof']:
    a(f'  s_memrealtime s[{sStamp}:{sStamp+1}]')
dstamp(0, 1, neg=True); dstamp(1, 1)
a(f'''  s_cmp_lg_u32 s{T.sW}, 0
  s_cbranch_scc1 L_tk_w
  s_lshl_b32 s40, s{sXcc}, 2
  s_add_u32 s40, s40, {DBG_XCD}
  v_mov_b32 v250, s40
  v_mov_b32 v251, 1
  v_mov_b32 v252, {DBG_GT}
  s_mov_b64 exec, 1
  global_atomic_add v248, v250, v251, s[{sDbg}:{sDbg+1}] sc0 sc1
  global_atomic_add v249, v252, v251, s[{sDbg}:{sDbg+1}] sc0 sc1
  s_mov_b64 exec, -1
L_tk_w:''')
emit_ln(a, 2, SC)
emit_ring_init(a, 2, SC)
a(f'''  s_cmp_lg_u32 s{T.sW}, 0
  s_cbranch_scc1 L_fl_w
  s_lshl_b32 s40, s2, 6
  s_add_u32 s40, s40, {FLG}
  v_lshlrev_b32 v1, 2, v0
  v_mov_b32 v2, 0
  s_mov_b32 exec_lo, 0xffff
  s_mov_b32 exec_hi, 0
  buffer_store_dword v2, v1, {WS}, s40 offen sc1
  s_mov_b64 exec, 1
  s_waitcnt vmcnt(0)
  v_mov_b32 v1, {LDS_TK}
  ds_write_b64 v1, v[248:249]
  s_waitcnt lgkmcnt(0)
  s_mov_b64 exec, -1
L_fl_w:
  s_waitcnt vmcnt(0)
  s_barrier
  s_cmp_lg_u32 s{T.sW}, 0
  s_cbranch_scc1 L_ar_w
  v_mov_b32 v4, {DBG_ARR}
  v_mov_b32 v2, 1
  s_mov_b64 exec, 1
  global_atomic_add v4, v2, s[{sDbg}:{sDbg+1}] sc1
  s_mov_b64 exec, -1
L_ar_w:
  v_mov_b32 v1, {LDS_TK}
  ds_read_b64 v[2:3], v1
  s_waitcnt lgkmcnt(0)
  v_readfirstlane_b32 s{sTk}, v2
  v_readfirstlane_b32 s{sGt}, v3
  s_mov_b32 s{sMode}, 0
  s_cmp_ge_u32 s{sXcc}, 4
  s_cbranch_scc1 L_wait
  s_cmp_ge_u32 s{sTk}, 32
  s_cbranch_scc1 L_wait
  s_mov_b32 s{c.sX}, s{sXcc}
  s_mov_b32 s{c.sJ}, s{sTk}
L_setup:
  s_load_dwordx4 s[64:67], s[0:1], {A_MEM0}
  s_load_dwordx4 s[68:71], s[0:1], {A_WK}
  s_load_dwordx2 s[72:73], s[0:1], {A_WO}
  s_mov_b32 s{c.sPar}, {cfg['par']}
  s_waitcnt lgkmcnt(0)''')
emit_ring_base(a, 50, 52)
srd(a, c.sRG, 's50', 's51', 4*MB)
srd(a, c.sT0, 's66', 's67', 8*MB); srd(a, c.sT0+4, 's68', 's69', 8*MB)
srd(a, c.sT0+8, 's70', 's71', 8*MB); srd(a, c.sT0+12, 's72', 's73', 8*MB)
srd(a, 76, 's64', 's65', 16384)
emit_setup(a)
emit_weights(a)
def emit_wait_all(p, cand):
    a(f'''{p}:
  s_cmp_lg_u32 s{c.sW}, 0
  s_cbranch_scc1 {p}_w
  v_mov_b32 v17, {DBG_ARR}
  s_mov_b32 s{sBnd}, {4*BOUND}
{p}_p:
  global_load_dword v18, v17, s[{sDbg}:{sDbg+1}] sc1
  s_waitcnt vmcnt(0)
  v_readfirstlane_b32 s40, v18
  s_nop 0
  s_cmp_ge_u32 s40, 256
  s_cbranch_scc1 {p}_ok
  s_sub_u32 s{sBnd}, s{sBnd}, 1
  s_cbranch_scc0 {p}_p
  v_mov_b32 v18, -1
  s_branch {p}_pub
{p}_ok:
  v_mov_b32 v16, {DBG_XCD}
  global_load_dwordx4 v[20:23], v16, s[{sDbg}:{sDbg+1}] sc1
  global_load_dwordx4 v[24:27], v16, s[{sDbg}:{sDbg+1}] offset:16 sc1
  s_waitcnt vmcnt(0)
  v_min_u32 v20, v20, v21
  v_min_u32 v22, v22, v23
  v_min_u32 v24, v24, v25
  v_min_u32 v26, v26, v27
  v_min_u32 v20, v20, v22
  v_min_u32 v24, v24, v26
  v_min_u32 v18, v20, v24
{p}_pub:
  v_mov_b32 v16, {LDS_TK}
  ds_write_b32 v16, v18 offset:8
  s_waitcnt lgkmcnt(0)
{p}_w:
  s_barrier
  v_mov_b32 v16, {LDS_TK}
  ds_read_b32 v17, v16 offset:8
  s_waitcnt lgkmcnt(0)
  v_readfirstlane_b32 s40, v17
  s_nop 0
  s_cmp_eq_u32 s40, -1
  s_cbranch_scc1 L_fail
  s_cmp_ge_u32 s40, {32 if not cfg['force'] else 33}
  s_cbranch_scc0 L_glob''')
    dstamp(2, 160)
    if cand: a('  s_branch L_chain_l')
    else:
        a(f'''  s_sub_u32 s{sQ}, s{sXcc}, 4
  s_and_b32 s{sQ}, s{sQ}, 3
  s_branch L_tasks''')
a(f'''  s_cmp_eq_u32 s{sMode}, 2
  s_cbranch_scc1 L_chain_g''')
emit_wait_all('L_waitc', True)
emit_wait_all('L_wait', False)
a(f'''L_glob:
  s_cmp_ge_u32 s{sGt}, 128
  s_cbranch_scc1 L_glob_t
  s_lshr_b32 s{c.sX}, s{sGt}, 5
  s_and_b32 s{c.sJ}, s{sGt}, 31
  s_mov_b32 s{sMode}, 2
  s_branch L_setup
L_glob_t:
  s_sub_u32 s{sQ}, s{sGt}, 128
  s_lshr_b32 s{sQ}, s{sQ}, 5
  s_and_b32 s{sQ}, s{sQ}, 3
  s_branch L_tasks''')

sPub = 48; sFo = 49
def after_a(a, pfx):
    if cfg['dbgt']:
        for wd, stp in ((4, 8), (5, 32)):
            l = a.label('L_cs')
            a(f'  s_cmp_eq_u32 s{c.sS}, {stp}\n  s_cbranch_scc0 {l}')
            dstamp(wd, 160, cond=f'  s_cmp_lg_u32 s{sPub}, 0')
            a(f'{l}:')
    a(f'''  s_cmp_eq_u32 s{sPub}, 0
  s_cbranch_scc1 {pfx}_npub
  s_sub_u32 s{c.sT}, s{c.sS}, 1
  s_max_i32 s{c.sT}, s{c.sT}, 0
  v_mov_b32 v254, s{c.sT}
  s_mov_b32 s{sFo}, {FLG + F_PROG}
  buffer_store_dword v254, off, s[{c.sWS}:{c.sWS+3}], s{sFo} sc1
{pfx}_npub:
  s_cmp_lg_u32 s{c.sW}, 3
  s_cbranch_scc1 {pfx}_nkv
  s_and_b32 s{c.sT}, s{c.sS}, 7
  s_cmp_lg_u32 s{c.sT}, 5
  s_cbranch_scc1 {pfx}_nkv
  s_add_u32 s{c.sT}, s{c.sS}, 3
  s_lshr_b32 s{c.sT}, s{c.sT}, 3
  s_min_u32 s{c.sT}, s{c.sT}, 7
  s_lshl_b32 s{c.sT}, s{c.sT}, 7
  s_add_u32 s{sFo}, s{c.sT}, {FLG + F_KV}
  buffer_load_dword v253, off, s[{c.sWS}:{c.sWS+3}], s{sFo} sc1
{pfx}_nkv:''')
def pre_red1(a, pfx, fail):
    nk = 0 if cfg['nokv'] else 8
    a(f'''  s_cmp_lg_u32 s{c.sW}, 3
  s_cbranch_scc1 {pfx}_kvok
  s_and_b32 s{c.sT}, s{c.sS}, 7
  s_cmp_lg_u32 s{c.sT}, 5
  s_cbranch_scc1 {pfx}_kvok
  s_waitcnt vmcnt({nk})
  s_mov_b32 s{c.sBound}, {BOUND}
{pfx}_kvp:
  v_readfirstlane_b32 s{c.sT}, v253
  s_nop 0
  s_cmp_ge_u32 s{c.sT}, 32
  s_cbranch_scc1 {pfx}_kvok
  buffer_load_dword v253, off, s[{c.sWS}:{c.sWS+3}], s{sFo} sc1
  s_waitcnt vmcnt(0)
  s_sub_u32 s{c.sBound}, s{c.sBound}, 1
  s_cbranch_scc0 {pfx}_kvp
  s_branch {fail}
{pfx}_kvok:''')
if not cfg['chainonly']:
    chain.HOOK['after_a'] = after_a; chain.HOOK['pre_red1'] = pre_red1
def stamp(a, k):
    l = a.label('L_st')
    a(f'  s_cmp_eq_u32 s{c.sS}, {cfg["stamp"]}\n  s_cbranch_scc0 {l}\n  s_memtime s[{64+2*k}:{65+2*k}]\n{l}:')
stf = stamp if cfg['stamp'] >= 0 else None
def chain_entry(mode, pfx):
    a(f'''  s_mov_b32 s{sPub}, 0
  s_add_u32 s50, s{c.sX}, s{c.sJ}
  s_cmp_lg_u32 s50, 0
  s_cbranch_scc1 {pfx}_np
  s_cmp_eq_u32 s{c.sW}, 2
  s_cselect_b32 s{sPub}, 1, 0
{pfx}_np:''')
    if not cfg['chainonly']:
        a(f'''  s_mov_b32 s{sFo}, {FLG + F_KV}
  s_mov_b32 s{c.sBound}, {BOUND}
{pfx}_kv0:
  buffer_load_dword v253, off, s[{c.sWS}:{c.sWS+3}], s{sFo} sc1
  s_waitcnt vmcnt(0)
  v_readfirstlane_b32 s50, v253
  s_nop 0
  s_cmp_ge_u32 s50, 32
  s_cbranch_scc1 {pfx}_kv0ok
  s_sub_u32 s{c.sBound}, s{c.sBound}, 1
  s_cbranch_scc0 {pfx}_kv0
  s_branch L_fail
{pfx}_kv0ok:''')
    if cfg['prof']:
        a('  s_memrealtime s[80:81]\n  s_memtime s[84:85]\n  s_waitcnt lgkmcnt(0)')
    dstamp(3, 160)
    emit_start(a, mode, 76)
    emit_loop(a, mode, pfx, 'L_fail', 'L_chain_done', stamp=stf)
a('L_chain_l:')
if cfg['dbgt']:
    a(f'''  s_add_u32 s50, s{c.sX}, s{c.sJ}
  s_add_u32 s50, s50, s{c.sW}
  s_cmp_lg_u32 s50, 0
  s_cbranch_scc1 L_noprobe
  v_mov_b32 v160, 0
  buffer_load_dword v161, v160, s[{c.sRG}:{c.sRG+3}], 0 offen offset:2048 sc1
  s_waitcnt vmcnt(0)''')
    for par in range(2):
        a(f'  s_mov_b32 s{84+par}, 0')
        for jb in range(8):
            a(f'''  s_mov_b32 s51, {3*524288 + jb*16384 + par*8192}
  s_memtime s[80:81]
  s_waitcnt lgkmcnt(0)
  buffer_load_dword v161, v160, s[{c.sRG}:{c.sRG+3}], s51 offen sc1
  s_waitcnt vmcnt(0)
  s_memtime s[82:83]
  s_waitcnt lgkmcnt(0)
  s_sub_u32 s82, s82, s80
  s_add_u32 s{84+par}, s{84+par}, s82''')
    a(f'''  v_mov_b32 v160, 40
  v_mov_b32 v162, s84
  v_mov_b32 v163, s85
  s_mov_b64 exec, 1
  global_store_dwordx2 v160, v[162:163], s[{sDbg}:{sDbg+1}]
  v_mov_b32 v162, s{c.sRG}
  v_mov_b32 v163, s{c.sRG+1}
  global_store_dwordx2 v160, v[162:163], s[{sDbg}:{sDbg+1}] offset:8
  s_mov_b64 exec, -1
  s_waitcnt vmcnt(0)
L_noprobe:''')
if cfg['nochain']:
    a(f'''  s_mov_b32 s50, {FLG + F_PROG}
  v_mov_b32 v16, 64
  buffer_store_dword v16, off, s[4:7], s50 sc1
  s_waitcnt vmcnt(0)
  s_branch L_end''')
chain_entry('L', 'LL')
a('L_chain_g:')
chain_entry('G', 'LG')
a(f'''L_chain_done:
  s_waitcnt vmcnt(0)
  s_barrier''')
dstamp(6, 160)
if cfg['prof']:
    a(f'''  s_memrealtime s[82:83]
  s_memtime s[86:87]
  s_waitcnt lgkmcnt(0)
  s_lshl_b32 s50, s{c.sX}, 5
  s_add_u32 s50, s50, s{c.sJ}
  s_lshl_b32 s50, s50, 2
  s_add_u32 s50, s50, s{c.sW}
  s_lshl_b32 s50, s50, 6
  s_add_u32 s50, s50, {200*MB}
  v_mov_b32 v1, s50
  s_sub_u32 s86, s86, s84''')
    for k in range(8): a(f'  v_mov_b32 v{2+k}, s{64+2*k}')
    a(f'''  v_mov_b32 v10, s86
  v_mov_b32 v11, s{sStamp}
  v_mov_b32 v12, s80
  v_mov_b32 v13, s82
  s_mov_b64 exec, 1
  buffer_store_dwordx4 v[2:5], v1, s[{c.sWS}:{c.sWS+3}], 0 offen
  buffer_store_dwordx4 v[6:9], v1, s[{c.sWS}:{c.sWS+3}], 0 offen offset:16
  buffer_store_dwordx4 v[10:13], v1, s[{c.sWS}:{c.sWS+3}], 0 offen offset:32
  s_mov_b64 exec, -1''')
a(f'''  s_cmp_lg_u32 s{c.sW}, 0
  s_cbranch_scc1 L_end
  s_mov_b32 s40, {FLG + F_CDONE}
  v_mov_b32 v1, s40
  v_mov_b32 v2, 1
  s_mov_b64 exec, 1
  buffer_atomic_add v2, v1, s[{c.sWS}:{c.sWS+3}], 0 offen sc0 sc1
  s_waitcnt vmcnt(0)
  v_readfirstlane_b32 s40, v2
  s_nop 0
  s_cmp_eq_u32 s40, 127
  s_cbranch_scc0 L_end
  s_mov_b32 s40, {FLG + F_PROG}
  v_mov_b32 v2, 64
  buffer_store_dword v2, off, s[{c.sWS}:{c.sWS+3}], s40 sc1
  s_waitcnt vmcnt(0)
  s_branch L_end''')

def wait_flag(off_const, sreg_idx, target, shift=7):
    l = a.label('L_wf')
    if sreg_idx is None: a(f'  s_mov_b32 s41, {FLG + off_const}')
    else: a(f'  s_lshl_b32 s41, s{sreg_idx}, {shift}\n  s_add_u32 s41, s41, {FLG + off_const}')
    a(f'''  s_cmp_lg_u32 s{T.sW}, 0
  s_cbranch_scc1 {l}_w
  s_mov_b32 s{sBnd}, {BOUND}
{l}_p:
  buffer_load_dword v1, off, {WS}, s41 sc1
  s_waitcnt vmcnt(0)
  v_readfirstlane_b32 s42, v1
  s_nop 0
  s_cmp_ge_u32 s42, {target}
  s_cbranch_scc1 {l}_w
  s_sub_u32 s{sBnd}, s{sBnd}, 1
  s_cbranch_scc0 {l}_p
  v_mov_b32 v1, {DBG_FAIL + 4}
  v_mov_b32 v2, 1
  s_mov_b64 exec, 1
  global_atomic_add v1, v2, s[{sDbg}:{sDbg+1}] sc1
  s_mov_b64 exec, -1
{l}_w:''')
sSig = 35
sBase = 32
a('L_tasks:')
a(f'  s_mov_b32 s{T.sW}, s{c.sW}')
a(f'  s_mov_b32 s{sSig}, -1')
if cfg['dbgt']: a('  s_mov_b32 s70, 15')
a('L_next:')
a(f'''  s_waitcnt vmcnt(0)
  s_barrier
  s_cmp_lg_u32 s{T.sW}, 0
  s_cbranch_scc1 L_next_w
  s_mov_b64 exec, 1''')
if cfg['prof']:
    a(f'''  s_cmp_eq_u32 s{sSig}, -1
  s_cbranch_scc1 L_nprof
  s_memrealtime s[82:83]
  s_memtime s[74:75]
  s_lshl_b32 s40, s{sQ}, 9
  s_add_u32 s40, s40, s{sTkt}
  s_lshl_b32 s40, s40, 5
  s_add_u32 s40, s40, {201*MB}
  s_waitcnt lgkmcnt(0)
  s_sub_u32 s41, s88, s86
  v_mov_b32 v8, s41
  s_sub_u32 s41, s74, s88
  v_mov_b32 v9, s41
  s_sub_u32 s41, s74, s86
  v_mov_b32 v10, s41
  v_mov_b32 v11, 0
  s_add_u32 s41, s40, 16
  buffer_store_dwordx4 v[8:11], off, {WS}, s41
  v_mov_b32 v4, s80
  v_mov_b32 v5, s84
  v_mov_b32 v6, s82
  s_lshl_b32 s41, s{sXcc}, 8
  s_add_u32 s41, s41, s{sTk}
  v_mov_b32 v7, s41
  buffer_store_dwordx4 v[4:7], off, {WS}, s40
L_nprof:''')
if cfg['dbgt']:
    a(f'''  s_memrealtime s[100:101]
  s_waitcnt lgkmcnt(0)
  s_lshl_b32 s40, s70, 2
  v_mov_b32 v1, s40
  v_mov_b32 v2, s100
  global_atomic_umax v1, v2, s[{sDbg}:{sDbg+1}] sc1''')
a(f'''  s_cmp_eq_u32 s{sSig}, -1
  s_cbranch_scc1 L_nosig''')
if cfg['wbl2']: a('  buffer_wbl2 sc1\n  s_waitcnt vmcnt(0)')
a(f'''  s_add_u32 s40, s{sSig}, {FLG}
  v_mov_b32 v1, s40
  v_mov_b32 v2, 1
  buffer_atomic_add v2, v1, {WS}, 0 offen sc1
L_nosig:
  s_lshl_b32 s40, s{sQ}, 5
  s_add_u32 s40, s40, {DBG_QUEUE}
  v_mov_b32 v1, s40
  v_mov_b32 v2, 1
  global_atomic_add v3, v1, v2, s[{sDbg}:{sDbg+1}] sc0 sc1
  s_waitcnt vmcnt(0)
  v_mov_b32 v1, {LDS_TK}
  ds_write_b32 v1, v3 offset:16
  s_waitcnt lgkmcnt(0)
  s_mov_b64 exec, -1
L_next_w:
  s_barrier
  v_mov_b32 v1, {LDS_TK}
  ds_read_b32 v3, v1 offset:16
  s_waitcnt lgkmcnt(0)
  v_readfirstlane_b32 s{sTkt}, v3''')
if cfg['prof']: a('  s_memrealtime s[80:81]\n  s_waitcnt lgkmcnt(0)')
ranges = []
ranges.append((32, 'KV0')); ranges.append((28, 'GU0')); ranges.append((4, 'WOF')); ranges.append((4, 'D0'))
ranges.append((28, 'GU4')); ranges.append((4, 'D4')); ranges.append((32, 'KV4')); ranges.append((32, 'Q'))
ranges.append((31*8, 'AW')); ranges.append((4, 'A31')); ranges.append((16, 'W31'))
start = 0
DW = dict(KV0=8, GU0=9, WOF=9, D0=14, GU4=14, D4=14, KV4=14, Q=14, AW=7, A31=7, W31=7)
for cnt, lab in ranges:
    if cfg['dbgt']: a(f'  s_mov_b32 s70, {DW[lab]}')
    a(f'''  s_sub_u32 s{sIdx}, s{sTkt}, {start}
  s_cmp_lt_u32 s{sTkt}, {start + cnt}
  s_cbranch_scc1 T_{lab}''')
    start += cnt
a('  s_branch L_end')
print('tasks per queue', start)
def mark():
    if cfg['prof']: a('  s_memrealtime s[84:85]\n  s_memtime s[86:87]\n  s_memtime s[88:89]\n  s_waitcnt lgkmcnt(0)')
def mark2():
    if cfg['prof']: a('  s_memtime s[88:89]\n  s_waitcnt lgkmcnt(0)')
a(f'''T_KV0:
  s_and_b32 s{T.sM}, s{sIdx}, 3
  s_lshr_b32 s40, s{sIdx}, 2
  s_branch T_KV
T_KV4:
  s_lshr_b32 s{T.sM}, s{sIdx}, 3
  s_add_u32 s{T.sM}, s{T.sM}, 4
  s_and_b32 s40, s{sIdx}, 7
T_KV:
  s_and_b32 s41, s40, 3
  s_lshl_b32 s{T.sN}, s{sQ}, 2
  s_add_u32 s{T.sN}, s{T.sN}, s41
  s_lshl_b32 s{sSig}, s{T.sM}, 7
  s_add_u32 s{sSig}, s{sSig}, {F_KV}
  s_cmp_ge_u32 s40, 4
  s_cbranch_scc1 T_V''')
emit_gemm_params(a, TY_K)
a(f'  s_mov_b32 s{sBase}, {K}\n  s_mov_b32 s{T.sTy}, 0\n  s_branch G_n')
a(f'''T_Q:
  s_lshr_b32 s{T.sM}, s{sIdx}, 2
  s_and_b32 s41, s{sIdx}, 3
  s_lshl_b32 s{T.sN}, s{sQ}, 2
  s_add_u32 s{T.sN}, s{T.sN}, s41
  s_lshl_b32 s{sSig}, s{T.sM}, 7
  s_add_u32 s{sSig}, s{sSig}, {F_Q}''')
emit_gemm_params(a, TY_Q)
a(f'  s_mov_b32 s{sBase}, {Q}\n  s_mov_b32 s{T.sTy}, 0\n  s_branch G_n')
a(f'''T_GU0:
  s_and_b32 s{T.sM}, s{sIdx}, 3
  s_branch T_GU
T_GU4:
  s_and_b32 s{T.sM}, s{sIdx}, 3
  s_add_u32 s{T.sM}, s{T.sM}, 4
T_GU:
  s_lshr_b32 s41, s{sIdx}, 2
  s_mul_i32 s{T.sN}, s{sQ}, 7
  s_add_u32 s{T.sN}, s{T.sN}, s41
  s_lshl_b32 s{sSig}, s{T.sM}, 7
  s_add_u32 s{sSig}, s{sSig}, {F_GU}''')
emit_gemm_params(a, TY_GU)
a(f'  s_mov_b32 s{T.sTy}, 2\n  s_branch G_n')
a(f'''T_D0:
  s_mov_b32 s{T.sM}, s{sIdx}
  s_branch T_D
T_D4:
  s_add_u32 s{T.sM}, s{sIdx}, 4
T_D:
  s_mov_b32 s{T.sN}, s{sQ}
  s_lshl_b32 s{sSig}, s{T.sM}, 7
  s_add_u32 s{sSig}, s{sSig}, {F_D}''')
wait_flag(F_GU, T.sM, 28)
a('  s_barrier')
emit_gemm_params(a, TY_D)
a(f'  s_mov_b32 s{T.sTy}, 3')
a('G_n:'); mark()
emit_gemm_main(a, False, 'G_n'); mark2()
a(f'''  s_cmp_eq_u32 s{T.sTy}, 2
  s_cbranch_scc1 G_egu
  s_cmp_eq_u32 s{T.sTy}, 3
  s_cbranch_scc1 G_ed''')
emit_epi_kq(a, f's{sBase}', SC); a('  s_branch L_next')
a('G_egu:'); emit_epi_gu(a, SC); a('  s_branch L_next')
a('G_ed:'); emit_epi_d(a, SC); a('  s_branch L_next')
a('T_V:'); emit_gemm_params(a, TY_V); mark(); emit_gemm_main(a, True, 'G_s'); mark2(); emit_epi_v(a, SC); a('  s_branch L_next')
a(f'''T_WOF:
  s_mov_b32 s{sSig}, {F_WOF}
  s_lshl_b32 s{T.sM}, s{sQ}, 5
  s_lshl_b32 s40, s{sIdx}, 3
  s_add_u32 s{T.sM}, s{T.sM}, s40
  s_add_u32 s{T.sN}, s{T.sM}, 8''')
mark()
a('T_WOF_l:')
emit_wo_repack(a, T.sM, SC)
a(f'''  s_add_u32 s{T.sM}, s{T.sM}, 1
  s_cmp_lt_u32 s{T.sM}, s{T.sN}
  s_cbranch_scc1 T_WOF_l
  s_branch L_next''')
a(f'''T_AW:
  s_lshr_b32 s{T.sM}, s{sIdx}, 3        ; block c
  s_and_b32 s40, s{sIdx}, 7
  s_cmp_ge_u32 s40, 4
  s_cbranch_scc1 T_W
  s_branch T_A
T_A31:
  s_mov_b32 s{T.sM}, 31
  s_mov_b32 s40, s{sIdx}
T_A:
  s_lshl_b32 s{sSig}, s{T.sM}, 7
  s_add_u32 s{sSig}, s{sSig}, {F_O}
  s_lshr_b32 s{T.sN}, s40, 1
  s_lshl_b32 s41, s{sQ}, 1
  s_add_u32 s{T.sN}, s{T.sN}, s41
  s_lshl_b32 s{T.sM}, s{T.sM}, 1
  s_and_b32 s40, s40, 1
  s_add_u32 s{T.sM}, s{T.sM}, s40       ; segment
  s_lshr_b32 s{T.sTy}, s{T.sM}, 3''')
wait_flag(F_Q, T.sTy, 16)
a(f'  s_add_u32 s{T.sTy}, s{T.sM}, 1')
l = a.label('L_wp')
a(f'''  s_mov_b32 s41, {FLG + F_PROG}
  s_cmp_lg_u32 s{T.sW}, 0
  s_cbranch_scc1 {l}_w
  s_mov_b32 s{sBnd}, {BOUND}
{l}_p:
  buffer_load_dword v1, off, {WS}, s41 sc1
  s_waitcnt vmcnt(0)
  v_readfirstlane_b32 s42, v1
  s_nop 0
  s_cmp_ge_u32 s42, s{T.sTy}
  s_cbranch_scc1 {l}_w
  s_sub_u32 s{sBnd}, s{sBnd}, 1
  s_cbranch_scc0 {l}_p
  v_mov_b32 v1, {DBG_FAIL + 8}
  v_mov_b32 v2, 1
  s_mov_b64 exec, 1
  global_atomic_add v1, v2, s[{sDbg}:{sDbg+1}] sc1
  s_mov_b64 exec, -1
{l}_w:
  s_barrier''')
mark()
emit_attn(a, T.sM, T.sN, SC)
a('  s_branch L_next')
def wo_waits(sBlk):
    wait_flag(F_WOF, None, 16)
    a(f'  s_lshr_b32 s{T.sTy}, s{sBlk}, 2')
    wait_flag(F_D, T.sTy, 4)
    wait_flag(F_O, sBlk, 16)
    a('  s_barrier')
a(f'''T_W:
  s_mov_b32 s{sSig}, {F_CDONE + 128}
  s_and_b32 s40, s40, 3
  s_lshl_b32 s{T.sN}, s{sQ}, 2
  s_add_u32 s{T.sN}, s{T.sN}, s40
  s_lshl_b32 s{T.sN}, s{T.sN}, 2''')
wo_waits(T.sM)
a(f'  s_lshl_b32 s{T.sM}, s{T.sM}, 2')
mark()
emit_wo_gemm(a, T.sM, T.sN, 4, 4)
a('  s_branch L_next')
a(f'''T_W31:
  s_mov_b32 s{sSig}, {F_CDONE + 128}
  s_mov_b32 s{T.sM}, 31''')
wo_waits(T.sM)
a(f'''  s_lshr_b32 s40, s{sIdx}, 3
  s_lshl_b32 s40, s40, 1
  s_add_u32 s{T.sM}, s40, 124
  s_and_b32 s40, s{sIdx}, 7
  s_lshl_b32 s{T.sN}, s{sQ}, 3
  s_add_u32 s{T.sN}, s{T.sN}, s40
  s_lshl_b32 s{T.sN}, s{T.sN}, 1''')
mark()
emit_wo_gemm(a, T.sM, T.sN, 2, 2, depth=8)
a('  s_branch L_next')
a(f'''L_fail:
  v_mov_b32 v1, {DBG_FAIL}
  v_mov_b32 v2, 1
  s_mov_b64 exec, 1
  global_atomic_add v1, v2, s[{sDbg}:{sDbg+1}] sc1
  s_waitcnt vmcnt(0)
L_end:
  s_endpgm''')
a(kernel_desc(NAME, 512, accum=256))
open(out, 'w').write(a.text())
check_local(out, NAME)
```

```python
import sys
from tasks import *
from chain import *
import chain
NAME = 'recurrent_scan__memory_aug_recurrent_mem_tr__glu_gated_reglu__prompt_kernel'
cfg = dict(dbgt=0, par=1, prof=0, wbl2=0, stamp=-1, force=0, chainonly=0, nochain=0)
cfg.update(chain.OPT)
out = sys.argv[1]
for x in sys.argv[2:]:
    k, v = x.split('='); cfg[k] = int(v)
for k in chain.OPT: chain.OPT[k] = cfg[k]
SC = ' sc1'
HDR = open('recurrent_scan__memory_aug_recurrent_mem_tr__glu_gated_reglu__prompt.s.ref').read().split('\n')
a = Asm(); c = C
for l in HDR[:15]: a(l)
LDS_TK = 131072
a(f'; @launch grid=(256,1,1) block=(256,1,1) lds={LDS_TK + 256}')
a('.amdgcn_target "amdgcn-amd-amdhsa--gfx950"')
a(kernel_head(NAME))
sDbg = 90; sXcc = 92; sTk = 93; sGt = 94; sMode = 95; sQ = 96; sTkt = 97; sIdx = 98; sBnd = 99
sStamp = 100
WS = f's[{T.sWS}:{T.sWS+3}]'
BOUND = 100000
def dstamp(word, v=1, neg=False, cond=None):
    if not cfg['dbgt']: return
    l = a.label('L_ds')
    a(cond if cond else f'  s_cmp_eq_u32 s{T.sW if v < 100 else c.sW}, 0')
    a(f"""  s_cbranch_scc0 {l}
  s_memrealtime s[100:101]
  s_waitcnt lgkmcnt(0)""")
    if neg: a('  s_not_b32 s100, s100')
    a(f"""  v_mov_b32 v{v}, {4*word}
  v_mov_b32 v{v+1}, s100
  s_mov_b64 exec, 1
  global_atomic_umax v{v}, v{v+1}, s[{sDbg}:{sDbg+1}] sc1
  s_mov_b64 exec, -1
{l}:""")
a(f'''  s_cmp_ge_u32 s2, 256
  s_cbranch_scc1 L_end
  s_load_dwordx2 s[{sDbg}:{sDbg+1}], s[0:1], {D_DBG}
  v_lshrrev_b32 v1, 6, v0
  v_and_b32 v0, 63, v0
  s_getreg_b32 s{sXcc}, hwreg(HW_REG_XCC_ID)
  v_readfirstlane_b32 s{T.sW}, v1
  s_and_b32 s{sXcc}, s{sXcc}, 7
  s_mov_b32 s{c.sW}, s{T.sW}''')
emit_ws_srd(a)
if cfg['prof']:
    a(f'  s_memrealtime s[{sStamp}:{sStamp+1}]')
dstamp(0, 1, neg=True); dstamp(1, 1)
a(f'''  s_cmp_lg_u32 s{T.sW}, 0
  s_cbranch_scc1 L_tk_w
  s_lshl_b32 s40, s{sXcc}, 2
  s_add_u32 s40, s40, {DBG_XCD}
  v_mov_b32 v250, s40
  v_mov_b32 v251, 1
  v_mov_b32 v252, {DBG_GT}
  s_mov_b64 exec, 1
  global_atomic_add v248, v250, v251, s[{sDbg}:{sDbg+1}] sc0 sc1
  global_atomic_add v249, v252, v251, s[{sDbg}:{sDbg+1}] sc0 sc1
  s_mov_b64 exec, -1
L_tk_w:''')
emit_ln(a, 2, SC)
emit_ring_init(a, 2, SC)
a(f'''  s_cmp_lg_u32 s{T.sW}, 0
  s_cbranch_scc1 L_fl_w
  s_lshl_b32 s40, s2, 6
  s_add_u32 s40, s40, {FLG}
  v_lshlrev_b32 v1, 2, v0
  v_mov_b32 v2, 0
  s_mov_b32 exec_lo, 0xffff
  s_mov_b32 exec_hi, 0
  buffer_store_dword v2, v1, {WS}, s40 offen sc1
  s_mov_b64 exec, 1
  s_waitcnt vmcnt(0)
  v_mov_b32 v1, {LDS_TK}
  ds_write_b64 v1, v[248:249]
  s_waitcnt lgkmcnt(0)''')
if cfg['dbgt']:
    a(f'''  v_readfirstlane_b32 s40, v248
  s_cmp_lg_u32 s40, 0
  s_cbranch_scc1 L_nosp
  s_cmp_ge_u32 s{sXcc}, 4
  s_cbranch_scc1 L_nosp
  v_mov_b32 v2, -1
  s_mov_b32 s44, 0
  s_mov_b32 s45, 0''')
    for i in range(4):
        for par in range(2):
            a(f'''  s_mov_b32 s41, {3*524288 + (8+i)*16384 + par*8192}
  s_memtime s[46:47]
  s_waitcnt lgkmcnt(0)
  buffer_store_dword v2, off, s[8:11], s41 sc1
  s_waitcnt vmcnt(0)
  s_memtime s[48:49]
  s_waitcnt lgkmcnt(0)
  s_sub_u32 s48, s48, s46
  s_add_u32 s{44+par}, s{44+par}, s48''')
    a(f'''  s_lshl_b32 s44, s44, 16
  s_or_b32 s44, s44, s45
  s_lshl_b32 s41, s{sXcc}, 2
  s_add_u32 s41, s41, 40
  v_mov_b32 v1, s41
  v_mov_b32 v2, s44
  global_store_dword v1, v2, s[{sDbg}:{sDbg+1}]
L_nosp:''')
a(f'''  s_mov_b64 exec, -1
L_fl_w:
  s_waitcnt vmcnt(0)
  s_barrier
  s_cmp_lg_u32 s{T.sW}, 0
  s_cbranch_scc1 L_ar_w
  v_mov_b32 v4, {DBG_ARR}
  v_mov_b32 v2, 1
  s_mov_b64 exec, 1
  global_atomic_add v4, v2, s[{sDbg}:{sDbg+1}] sc1
  s_mov_b64 exec, -1
L_ar_w:
  v_mov_b32 v1, {LDS_TK}
  ds_read_b64 v[2:3], v1
  s_waitcnt lgkmcnt(0)
  v_readfirstlane_b32 s{sTk}, v2
  v_readfirstlane_b32 s{sGt}, v3
  s_mov_b32 s{sMode}, 0
  s_cmp_ge_u32 s{sXcc}, 4
  s_cbranch_scc1 L_wait
  s_cmp_ge_u32 s{sTk}, 32
  s_cbranch_scc1 L_wait
  s_mov_b32 s{c.sX}, s{sXcc}
  s_mov_b32 s{c.sJ}, s{sTk}
L_setup:
  s_load_dwordx4 s[64:67], s[0:1], {A_MEM0}
  s_load_dwordx4 s[68:71], s[0:1], {A_WK}
  s_load_dwordx2 s[72:73], s[0:1], {A_WO}
  s_mov_b32 s{c.sPar}, {cfg['par']}
  s_waitcnt lgkmcnt(0)''')
emit_ring_base(a, 50, 52)
srd(a, c.sRG, 's50', 's51', 4*MB)
srd(a, c.sT0, 's66', 's67', 8*MB); srd(a, c.sT0+4, 's68', 's69', 8*MB)
srd(a, c.sT0+8, 's70', 's71', 8*MB); srd(a, c.sT0+12, 's72', 's73', 8*MB)
srd(a, 76, 's64', 's65', 16384)
emit_setup(a)
emit_weights(a)
def emit_wait_all(p, cand):
    a(f'''{p}:
  s_cmp_lg_u32 s{c.sW}, 0
  s_cbranch_scc1 {p}_w
  v_mov_b32 v17, {DBG_ARR}
  s_mov_b32 s{sBnd}, {4*BOUND}
{p}_p:
  global_load_dword v18, v17, s[{sDbg}:{sDbg+1}] sc1
  s_waitcnt vmcnt(0)
  v_readfirstlane_b32 s40, v18
  s_nop 0
  s_cmp_ge_u32 s40, 256
  s_cbranch_scc1 {p}_ok
  s_sub_u32 s{sBnd}, s{sBnd}, 1
  s_cbranch_scc0 {p}_p
  v_mov_b32 v18, -1
  s_branch {p}_pub
{p}_ok:
  v_mov_b32 v16, {DBG_XCD}
  global_load_dwordx4 v[20:23], v16, s[{sDbg}:{sDbg+1}] sc1
  global_load_dwordx4 v[24:27], v16, s[{sDbg}:{sDbg+1}] offset:16 sc1
  s_waitcnt vmcnt(0)
  v_min_u32 v20, v20, v21
  v_min_u32 v22, v22, v23
  v_min_u32 v24, v24, v25
  v_min_u32 v26, v26, v27
  v_min_u32 v20, v20, v22
  v_min_u32 v24, v24, v26
  v_min_u32 v18, v20, v24
{p}_pub:
  v_mov_b32 v16, {LDS_TK}
  ds_write_b32 v16, v18 offset:8
  s_waitcnt lgkmcnt(0)
{p}_w:
  s_barrier
  v_mov_b32 v16, {LDS_TK}
  ds_read_b32 v17, v16 offset:8
  s_waitcnt lgkmcnt(0)
  v_readfirstlane_b32 s40, v17
  s_nop 0
  s_cmp_eq_u32 s40, -1
  s_cbranch_scc1 L_fail
  s_cmp_ge_u32 s40, {32 if not cfg['force'] else 33}
  s_cbranch_scc0 L_glob''')
    dstamp(2, 160)
    if cand: a('  s_branch L_chain_l')
    else:
        a(f'''  s_sub_u32 s{sQ}, s{sXcc}, 4
  s_and_b32 s{sQ}, s{sQ}, 3
  s_branch L_tasks''')
a(f'''  s_cmp_eq_u32 s{sMode}, 2
  s_cbranch_scc1 L_chain_g''')
emit_wait_all('L_waitc', True)
emit_wait_all('L_wait', False)
a(f'''L_glob:
  s_cmp_ge_u32 s{sGt}, 128
  s_cbranch_scc1 L_glob_t
  s_lshr_b32 s{c.sX}, s{sGt}, 5
  s_and_b32 s{c.sJ}, s{sGt}, 31
  s_mov_b32 s{sMode}, 2
  s_branch L_setup
L_glob_t:
  s_sub_u32 s{sQ}, s{sGt}, 128
  s_lshr_b32 s{sQ}, s{sQ}, 5
  s_and_b32 s{sQ}, s{sQ}, 3
  s_branch L_tasks''')

sPub = 48; sFo = 49
def after_a(a, pfx):
    if cfg['dbgt']:
        for wd, stp in ():
            l = a.label('L_cs')
            a(f'  s_cmp_eq_u32 s{c.sS}, {stp}\n  s_cbranch_scc0 {l}')
            dstamp(wd, 160, cond=f'  s_cmp_lg_u32 s{sPub}, 0')
            a(f'{l}:')
    a(f'''  s_cmp_eq_u32 s{sPub}, 0
  s_cbranch_scc1 {pfx}_npub
  s_sub_u32 s{c.sT}, s{c.sS}, 1
  s_max_i32 s{c.sT}, s{c.sT}, 0
  v_mov_b32 v254, s{c.sT}
  s_mov_b32 s{sFo}, {FLG + F_PROG}
  buffer_store_dword v254, off, s[{c.sWS}:{c.sWS+3}], s{sFo} sc1
{pfx}_npub:
  s_cmp_lg_u32 s{c.sW}, 3
  s_cbranch_scc1 {pfx}_nkv
  s_and_b32 s{c.sT}, s{c.sS}, 7
  s_cmp_lg_u32 s{c.sT}, 5
  s_cbranch_scc1 {pfx}_nkv
  s_add_u32 s{c.sT}, s{c.sS}, 3
  s_lshr_b32 s{c.sT}, s{c.sT}, 3
  s_min_u32 s{c.sT}, s{c.sT}, 7
  s_lshl_b32 s{c.sT}, s{c.sT}, 7
  s_add_u32 s{sFo}, s{c.sT}, {FLG + F_KV}
  buffer_load_dword v253, off, s[{c.sWS}:{c.sWS+3}], s{sFo} sc1
{pfx}_nkv:''')
def pre_red1(a, pfx, fail):
    nk = 0 if cfg['nokv'] else 8
    a(f'''  s_cmp_lg_u32 s{c.sW}, 3
  s_cbranch_scc1 {pfx}_kvok
  s_and_b32 s{c.sT}, s{c.sS}, 7
  s_cmp_lg_u32 s{c.sT}, 5
  s_cbranch_scc1 {pfx}_kvok
  s_waitcnt vmcnt({nk})
  s_mov_b32 s{c.sBound}, {BOUND}
{pfx}_kvp:
  v_readfirstlane_b32 s{c.sT}, v253
  s_nop 0
  s_cmp_ge_u32 s{c.sT}, 32
  s_cbranch_scc1 {pfx}_kvok
  buffer_load_dword v253, off, s[{c.sWS}:{c.sWS+3}], s{sFo} sc1
  s_waitcnt vmcnt(0)
  s_sub_u32 s{c.sBound}, s{c.sBound}, 1
  s_cbranch_scc0 {pfx}_kvp
  s_branch {fail}
{pfx}_kvok:''')
if not cfg['chainonly']:
    chain.HOOK['after_a'] = after_a; chain.HOOK['pre_red1'] = pre_red1
def stamp(a, k):
    l = a.label('L_st')
    a(f'  s_cmp_eq_u32 s{c.sS}, {cfg["stamp"]}\n  s_cbranch_scc0 {l}\n  s_memtime s[{64+2*k}:{65+2*k}]\n{l}:')
stf = stamp if cfg['stamp'] >= 0 else None
def chain_entry(mode, pfx):
    a(f'''  s_mov_b32 s{sPub}, 0
  s_add_u32 s50, s{c.sX}, s{c.sJ}
  s_cmp_lg_u32 s50, 0
  s_cbranch_scc1 {pfx}_np
  s_cmp_eq_u32 s{c.sW}, 2
  s_cselect_b32 s{sPub}, 1, 0
{pfx}_np:''')
    if not cfg['chainonly']:
        a(f'''  s_mov_b32 s{sFo}, {FLG + F_KV}
  s_mov_b32 s{c.sBound}, {BOUND}
{pfx}_kv0:
  buffer_load_dword v253, off, s[{c.sWS}:{c.sWS+3}], s{sFo} sc1
  s_waitcnt vmcnt(0)
  v_readfirstlane_b32 s50, v253
  s_nop 0
  s_cmp_ge_u32 s50, 32
  s_cbranch_scc1 {pfx}_kv0ok
  s_sub_u32 s{c.sBound}, s{c.sBound}, 1
  s_cbranch_scc0 {pfx}_kv0
  s_branch L_fail
{pfx}_kv0ok:''')
    if cfg['prof']:
        a('  s_memrealtime s[80:81]\n  s_memtime s[84:85]\n  s_waitcnt lgkmcnt(0)')
    dstamp(3, 160)
    emit_start(a, mode, 76)
    emit_loop(a, mode, pfx, 'L_fail', 'L_chain_done', stamp=stf)
a('L_chain_l:')
if cfg['dbgt']:
    a(f'''  s_add_u32 s50, s{c.sJ}, s{c.sW}
  s_cmp_lg_u32 s50, 0
  s_cbranch_scc1 L_noprobe
  v_mov_b32 v160, 0
  buffer_load_dword v161, v160, s[{c.sRG}:{c.sRG+3}], 0 offen offset:2048 sc1
  s_waitcnt vmcnt(0)''')
    for par in range(2):
        a(f'  s_mov_b32 s{84+par}, 0')
        for jb in range(8):
            a(f'''  s_mov_b32 s51, {3*524288 + jb*16384 + par*8192}
  s_memtime s[80:81]
  s_waitcnt lgkmcnt(0)
  buffer_load_dword v161, v160, s[{c.sRG}:{c.sRG+3}], s51 offen sc1
  s_waitcnt vmcnt(0)
  s_memtime s[82:83]
  s_waitcnt lgkmcnt(0)
  s_sub_u32 s82, s82, s80
  s_add_u32 s{84+par}, s{84+par}, s82''')
    a(f'''  s_lshl_b32 s84, s84, 16
  s_or_b32 s84, s84, s85
  s_and_b32 s51, s{c.sX}, 1
  s_lshl_b32 s51, s51, 2
  s_lshr_b32 s52, s{c.sX}, 1
  s_lshl_b32 s52, s52, 4
  s_add_u32 s51, s51, s52
  s_add_u32 s51, s51, 16
  v_mov_b32 v160, s51
  v_mov_b32 v162, s84
  s_mov_b64 exec, 1
  global_store_dword v160, v162, s[{sDbg}:{sDbg+1}]
  s_mov_b64 exec, -1
  s_waitcnt vmcnt(0)
L_noprobe:''')
if cfg['nochain']:
    a(f'''  s_mov_b32 s50, {FLG + F_PROG}
  v_mov_b32 v16, 64
  buffer_store_dword v16, off, s[4:7], s50 sc1
  s_waitcnt vmcnt(0)
  s_branch L_end''')
chain_entry('L', 'LL')
a('L_chain_g:')
chain_entry('G', 'LG')
a(f'''L_chain_done:
  s_waitcnt vmcnt(0)
  s_barrier''')
dstamp(6, 160)
if cfg['prof']:
    a(f'''  s_memrealtime s[82:83]
  s_memtime s[86:87]
  s_waitcnt lgkmcnt(0)
  s_lshl_b32 s50, s{c.sX}, 5
  s_add_u32 s50, s50, s{c.sJ}
  s_lshl_b32 s50, s50, 2
  s_add_u32 s50, s50, s{c.sW}
  s_lshl_b32 s50, s50, 6
  s_add_u32 s50, s50, {200*MB}
  v_mov_b32 v1, s50
  s_sub_u32 s86, s86, s84''')
    for k in range(8): a(f'  v_mov_b32 v{2+k}, s{64+2*k}')
    a(f'''  v_mov_b32 v10, s86
  v_mov_b32 v11, s{sStamp}
  v_mov_b32 v12, s80
  v_mov_b32 v13, s82
  s_mov_b64 exec, 1
  buffer_store_dwordx4 v[2:5], v1, s[{c.sWS}:{c.sWS+3}], 0 offen
  buffer_store_dwordx4 v[6:9], v1, s[{c.sWS}:{c.sWS+3}], 0 offen offset:16
  buffer_store_dwordx4 v[10:13], v1, s[{c.sWS}:{c.sWS+3}], 0 offen offset:32
  s_mov_b64 exec, -1''')
a(f'''  s_cmp_lg_u32 s{c.sW}, 0
  s_cbranch_scc1 L_end
  s_mov_b32 s40, {FLG + F_CDONE}
  v_mov_b32 v1, s40
  v_mov_b32 v2, 1
  s_mov_b64 exec, 1
  buffer_atomic_add v2, v1, s[{c.sWS}:{c.sWS+3}], 0 offen sc0 sc1
  s_waitcnt vmcnt(0)
  v_readfirstlane_b32 s40, v2
  s_nop 0
  s_cmp_eq_u32 s40, 127
  s_cbranch_scc0 L_end
  s_mov_b32 s40, {FLG + F_PROG}
  v_mov_b32 v2, 64
  buffer_store_dword v2, off, s[{c.sWS}:{c.sWS+3}], s40 sc1
  s_waitcnt vmcnt(0)
  s_branch L_end''')

def wait_flag(off_const, sreg_idx, target, shift=7):
    l = a.label('L_wf')
    if sreg_idx is None: a(f'  s_mov_b32 s41, {FLG + off_const}')
    else: a(f'  s_lshl_b32 s41, s{sreg_idx}, {shift}\n  s_add_u32 s41, s41, {FLG + off_const}')
    a(f'''  s_cmp_lg_u32 s{T.sW}, 0
  s_cbranch_scc1 {l}_w
  s_mov_b32 s{sBnd}, {BOUND}
{l}_p:
  buffer_load_dword v1, off, {WS}, s41 sc1
  s_waitcnt vmcnt(0)
  v_readfirstlane_b32 s42, v1
  s_nop 0
  s_cmp_ge_u32 s42, {target}
  s_cbranch_scc1 {l}_w
  s_sub_u32 s{sBnd}, s{sBnd}, 1
  s_cbranch_scc0 {l}_p
  v_mov_b32 v1, {DBG_FAIL + 4}
  v_mov_b32 v2, 1
  s_mov_b64 exec, 1
  global_atomic_add v1, v2, s[{sDbg}:{sDbg+1}] sc1
  s_mov_b64 exec, -1
{l}_w:''')
sSig = 35
sBase = 32
a('L_tasks:')
a(f'  s_mov_b32 s{T.sW}, s{c.sW}')
a(f'  s_mov_b32 s{sSig}, -1')
if cfg['dbgt']: a('  s_mov_b32 s70, 15')
a('L_next:')
a(f'''  s_waitcnt vmcnt(0)
  s_barrier
  s_cmp_lg_u32 s{T.sW}, 0
  s_cbranch_scc1 L_next_w
  s_mov_b64 exec, 1''')
if cfg['prof']:
    a(f'''  s_cmp_eq_u32 s{sSig}, -1
  s_cbranch_scc1 L_nprof
  s_memrealtime s[82:83]
  s_memtime s[74:75]
  s_lshl_b32 s40, s{sQ}, 9
  s_add_u32 s40, s40, s{sTkt}
  s_lshl_b32 s40, s40, 5
  s_add_u32 s40, s40, {201*MB}
  s_waitcnt lgkmcnt(0)
  s_sub_u32 s41, s88, s86
  v_mov_b32 v8, s41
  s_sub_u32 s41, s74, s88
  v_mov_b32 v9, s41
  s_sub_u32 s41, s74, s86
  v_mov_b32 v10, s41
  v_mov_b32 v11, 0
  s_add_u32 s41, s40, 16
  buffer_store_dwordx4 v[8:11], off, {WS}, s41
  v_mov_b32 v4, s80
  v_mov_b32 v5, s84
  v_mov_b32 v6, s82
  s_lshl_b32 s41, s{sXcc}, 8
  s_add_u32 s41, s41, s{sTk}
  v_mov_b32 v7, s41
  buffer_store_dwordx4 v[4:7], off, {WS}, s40
L_nprof:''')
if cfg['dbgt']:
    a(f'''  s_memrealtime s[100:101]
  s_waitcnt lgkmcnt(0)
  s_lshl_b32 s40, s70, 2
  v_mov_b32 v1, s40
  v_mov_b32 v2, s100
  global_atomic_umax v1, v2, s[{sDbg}:{sDbg+1}] sc1''')
a(f'''  s_cmp_eq_u32 s{sSig}, -1
  s_cbranch_scc1 L_nosig''')
if cfg['wbl2']: a('  buffer_wbl2 sc1\n  s_waitcnt vmcnt(0)')
a(f'''  s_add_u32 s40, s{sSig}, {FLG}
  v_mov_b32 v1, s40
  v_mov_b32 v2, 1
  buffer_atomic_add v2, v1, {WS}, 0 offen sc1
L_nosig:
  s_lshl_b32 s40, s{sQ}, 5
  s_add_u32 s40, s40, {DBG_QUEUE}
  v_mov_b32 v1, s40
  v_mov_b32 v2, 1
  global_atomic_add v3, v1, v2, s[{sDbg}:{sDbg+1}] sc0 sc1
  s_waitcnt vmcnt(0)
  v_mov_b32 v1, {LDS_TK}
  ds_write_b32 v1, v3 offset:16
  s_waitcnt lgkmcnt(0)
  s_mov_b64 exec, -1
L_next_w:
  s_barrier
  v_mov_b32 v1, {LDS_TK}
  ds_read_b32 v3, v1 offset:16
  s_waitcnt lgkmcnt(0)
  v_readfirstlane_b32 s{sTkt}, v3''')
if cfg['prof']: a('  s_memrealtime s[80:81]\n  s_waitcnt lgkmcnt(0)')
ranges = []
ranges.append((32, 'KV0')); ranges.append((28, 'GU0')); ranges.append((4, 'WOF')); ranges.append((4, 'D0'))
ranges.append((28, 'GU4')); ranges.append((4, 'D4')); ranges.append((32, 'KV4')); ranges.append((32, 'Q'))
ranges.append((31*8, 'AW')); ranges.append((4, 'A31')); ranges.append((16, 'W31'))
start = 0
DW = dict(KV0=14, GU0=14, WOF=14, D0=14, GU4=14, D4=14, KV4=14, Q=14, AW=7, A31=7, W31=7)
for cnt, lab in ranges:
    if cfg['dbgt']: a(f'  s_mov_b32 s70, {DW[lab]}')
    a(f'''  s_sub_u32 s{sIdx}, s{sTkt}, {start}
  s_cmp_lt_u32 s{sTkt}, {start + cnt}
  s_cbranch_scc1 T_{lab}''')
    start += cnt
a('  s_branch L_end')
print('tasks per queue', start)
def mark():
    if cfg['prof']: a('  s_memrealtime s[84:85]\n  s_memtime s[86:87]\n  s_memtime s[88:89]\n  s_waitcnt lgkmcnt(0)')
def mark2():
    if cfg['prof']: a('  s_memtime s[88:89]\n  s_waitcnt lgkmcnt(0)')
a(f'''T_KV0:
  s_and_b32 s{T.sM}, s{sIdx}, 3
  s_lshr_b32 s40, s{sIdx}, 2
  s_branch T_KV
T_KV4:
  s_lshr_b32 s{T.sM}, s{sIdx}, 3
  s_add_u32 s{T.sM}, s{T.sM}, 4
  s_and_b32 s40, s{sIdx}, 7
T_KV:
  s_and_b32 s41, s40, 3
  s_lshl_b32 s{T.sN}, s{sQ}, 2
  s_add_u32 s{T.sN}, s{T.sN}, s41
  s_lshl_b32 s{sSig}, s{T.sM}, 7
  s_add_u32 s{sSig}, s{sSig}, {F_KV}
  s_cmp_ge_u32 s40, 4
  s_cbranch_scc1 T_V''')
emit_gemm_params(a, TY_K)
a(f'  s_mov_b32 s{sBase}, {K}\n  s_mov_b32 s{T.sTy}, 0\n  s_branch G_n')
a(f'''T_Q:
  s_lshr_b32 s{T.sM}, s{sIdx}, 2
  s_and_b32 s41, s{sIdx}, 3
  s_lshl_b32 s{T.sN}, s{sQ}, 2
  s_add_u32 s{T.sN}, s{T.sN}, s41
  s_lshl_b32 s{sSig}, s{T.sM}, 7
  s_add_u32 s{sSig}, s{sSig}, {F_Q}''')
emit_gemm_params(a, TY_Q)
a(f'  s_mov_b32 s{sBase}, {Q}\n  s_mov_b32 s{T.sTy}, 0\n  s_branch G_n')
a(f'''T_GU0:
  s_and_b32 s{T.sM}, s{sIdx}, 3
  s_branch T_GU
T_GU4:
  s_and_b32 s{T.sM}, s{sIdx}, 3
  s_add_u32 s{T.sM}, s{T.sM}, 4
T_GU:
  s_lshr_b32 s41, s{sIdx}, 2
  s_mul_i32 s{T.sN}, s{sQ}, 7
  s_add_u32 s{T.sN}, s{T.sN}, s41
  s_lshl_b32 s{sSig}, s{T.sM}, 7
  s_add_u32 s{sSig}, s{sSig}, {F_GU}''')
emit_gemm_params(a, TY_GU)
a(f'  s_mov_b32 s{T.sTy}, 2\n  s_branch G_n')
a(f'''T_D0:
  s_mov_b32 s{T.sM}, s{sIdx}
  s_branch T_D
T_D4:
  s_add_u32 s{T.sM}, s{sIdx}, 4
T_D:
  s_mov_b32 s{T.sN}, s{sQ}
  s_lshl_b32 s{sSig}, s{T.sM}, 7
  s_add_u32 s{sSig}, s{sSig}, {F_D}''')
wait_flag(F_GU, T.sM, 28)
a('  s_barrier')
emit_gemm_params(a, TY_D)
a(f'  s_mov_b32 s{T.sTy}, 3')
a('G_n:'); mark()
emit_gemm_main(a, False, 'G_n'); mark2()
a(f'''  s_cmp_eq_u32 s{T.sTy}, 2
  s_cbranch_scc1 G_egu
  s_cmp_eq_u32 s{T.sTy}, 3
  s_cbranch_scc1 G_ed''')
emit_epi_kq(a, f's{sBase}', SC); a('  s_branch L_next')
a('G_egu:'); emit_epi_gu(a, SC); a('  s_branch L_next')
a('G_ed:'); emit_epi_d(a, SC); a('  s_branch L_next')
a('T_V:'); emit_gemm_params(a, TY_V); mark(); emit_gemm_main(a, True, 'G_s'); mark2(); emit_epi_v(a, SC); a('  s_branch L_next')
a(f'''T_WOF:
  s_mov_b32 s{sSig}, {F_WOF}
  s_lshl_b32 s{T.sM}, s{sQ}, 5
  s_lshl_b32 s40, s{sIdx}, 3
  s_add_u32 s{T.sM}, s{T.sM}, s40
  s_add_u32 s{T.sN}, s{T.sM}, 8''')
mark()
a('T_WOF_l:')
emit_wo_repack(a, T.sM, SC)
a(f'''  s_add_u32 s{T.sM}, s{T.sM}, 1
  s_cmp_lt_u32 s{T.sM}, s{T.sN}
  s_cbranch_scc1 T_WOF_l
  s_branch L_next''')
a(f'''T_AW:
  s_lshr_b32 s{T.sM}, s{sIdx}, 3        ; block c
  s_and_b32 s40, s{sIdx}, 7
  s_cmp_ge_u32 s40, 4
  s_cbranch_scc1 T_W
  s_branch T_A
T_A31:
  s_mov_b32 s{T.sM}, 31
  s_mov_b32 s40, s{sIdx}
T_A:
  s_lshl_b32 s{sSig}, s{T.sM}, 7
  s_add_u32 s{sSig}, s{sSig}, {F_O}
  s_lshr_b32 s{T.sN}, s40, 1
  s_lshl_b32 s41, s{sQ}, 1
  s_add_u32 s{T.sN}, s{T.sN}, s41
  s_lshl_b32 s{T.sM}, s{T.sM}, 1
  s_and_b32 s40, s40, 1
  s_add_u32 s{T.sM}, s{T.sM}, s40       ; segment
  s_lshr_b32 s{T.sTy}, s{T.sM}, 3''')
wait_flag(F_Q, T.sTy, 16)
a(f'  s_add_u32 s{T.sTy}, s{T.sM}, 1')
l = a.label('L_wp')
a(f'''  s_mov_b32 s41, {FLG + F_PROG}
  s_cmp_lg_u32 s{T.sW}, 0
  s_cbranch_scc1 {l}_w
  s_mov_b32 s{sBnd}, {BOUND}
{l}_p:
  buffer_load_dword v1, off, {WS}, s41 sc1
  s_waitcnt vmcnt(0)
  v_readfirstlane_b32 s42, v1
  s_nop 0
  s_cmp_ge_u32 s42, s{T.sTy}
  s_cbranch_scc1 {l}_w
  s_sub_u32 s{sBnd}, s{sBnd}, 1
  s_cbranch_scc0 {l}_p
  v_mov_b32 v1, {DBG_FAIL + 8}
  v_mov_b32 v2, 1
  s_mov_b64 exec, 1
  global_atomic_add v1, v2, s[{sDbg}:{sDbg+1}] sc1
  s_mov_b64 exec, -1
{l}_w:
  s_barrier''')
mark()
emit_attn(a, T.sM, T.sN, SC)
a('  s_branch L_next')
def wo_waits(sBlk):
    wait_flag(F_WOF, None, 16)
    a(f'  s_lshr_b32 s{T.sTy}, s{sBlk}, 2')
    wait_flag(F_D, T.sTy, 4)
    wait_flag(F_O, sBlk, 16)
    a('  s_barrier')
a(f'''T_W:
  s_mov_b32 s{sSig}, {F_CDONE + 128}
  s_and_b32 s40, s40, 3
  s_lshl_b32 s{T.sN}, s{sQ}, 2
  s_add_u32 s{T.sN}, s{T.sN}, s40
  s_lshl_b32 s{T.sN}, s{T.sN}, 2''')
wo_waits(T.sM)
a(f'  s_lshl_b32 s{T.sM}, s{T.sM}, 2')
mark()
emit_wo_gemm(a, T.sM, T.sN, 4, 4)
a('  s_branch L_next')
a(f'''T_W31:
  s_mov_b32 s{sSig}, {F_CDONE + 128}
  s_mov_b32 s{T.sM}, 31''')
wo_waits(T.sM)
a(f'''  s_lshr_b32 s40, s{sIdx}, 3
  s_lshl_b32 s40, s40, 1
  s_add_u32 s{T.sM}, s40, 124
  s_and_b32 s40, s{sIdx}, 7
  s_lshl_b32 s{T.sN}, s{sQ}, 3
  s_add_u32 s{T.sN}, s{T.sN}, s40
  s_lshl_b32 s{T.sN}, s{T.sN}, 1''')
mark()
emit_wo_gemm(a, T.sM, T.sN, 2, 2, depth=8)
a('  s_branch L_next')
a(f'''L_fail:
  v_mov_b32 v1, {DBG_FAIL}
  v_mov_b32 v2, 1
  s_mov_b64 exec, 1
  global_atomic_add v1, v2, s[{sDbg}:{sDbg+1}] sc1
  s_waitcnt vmcnt(0)
L_end:
  s_endpgm''')
a(kernel_desc(NAME, 512, accum=256))
open(out, 'w').write(a.text())
check_local(out, NAME)
```

```python
import sys
from tasks import *
from chain import *
import chain
NAME = 'recurrent_scan__memory_aug_recurrent_mem_tr__glu_gated_reglu__prompt_kernel'
cfg = dict(dbgt=0, par=2, prof=0, wbl2=0, stamp=-1, force=0, chainonly=0, nochain=0)
cfg.update(chain.OPT)
out = sys.argv[1]
for x in sys.argv[2:]:
    k, v = x.split('='); cfg[k] = int(v)
for k in chain.OPT: chain.OPT[k] = cfg[k]
SC = ' sc1'
HDR = open('recurrent_scan__memory_aug_recurrent_mem_tr__glu_gated_reglu__prompt.s.ref').read().split('\n')
a = Asm(); c = C
for l in HDR[:15]: a(l)
LDS_TK = 131072
a(f'; @launch grid=(256,1,1) block=(256,1,1) lds={LDS_TK + 256}')
a('.amdgcn_target "amdgcn-amd-amdhsa--gfx950"')
a(kernel_head(NAME))
sDbg = 90; sXcc = 92; sTk = 93; sGt = 94; sMode = 95; sQ = 96; sTkt = 97; sIdx = 98; sBnd = 99
sStamp = 100
WS = f's[{T.sWS}:{T.sWS+3}]'
BOUND = 100000
def dstamp(word, v=1, neg=False, cond=None):
    if not cfg['dbgt']: return
    l = a.label('L_ds')
    a(cond if cond else f'  s_cmp_eq_u32 s{T.sW if v < 100 else c.sW}, 0')
    a(f"""  s_cbranch_scc0 {l}
  s_memrealtime s[100:101]
  s_waitcnt lgkmcnt(0)""")
    if neg: a('  s_not_b32 s100, s100')
    a(f"""  v_mov_b32 v{v}, {4*word}
  v_mov_b32 v{v+1}, s100
  s_mov_b64 exec, 1
  global_atomic_umax v{v}, v{v+1}, s[{sDbg}:{sDbg+1}] sc1
  s_mov_b64 exec, -1
{l}:""")
a(f'''  s_cmp_ge_u32 s2, 256
  s_cbranch_scc1 L_end
  s_load_dwordx2 s[{sDbg}:{sDbg+1}], s[0:1], {D_DBG}
  v_lshrrev_b32 v1, 6, v0
  v_and_b32 v0, 63, v0
  s_getreg_b32 s{sXcc}, hwreg(HW_REG_XCC_ID)
  v_readfirstlane_b32 s{T.sW}, v1
  s_and_b32 s{sXcc}, s{sXcc}, 7
  s_mov_b32 s{c.sW}, s{T.sW}''')
emit_ws_srd(a)
if cfg['prof']:
    a(f'  s_memrealtime s[{sStamp}:{sStamp+1}]')
dstamp(0, 1, neg=True); dstamp(1, 1)
a(f'''  s_cmp_lg_u32 s{T.sW}, 0
  s_cbranch_scc1 L_tk_w
  s_lshl_b32 s40, s{sXcc}, 2
  s_add_u32 s40, s40, {DBG_XCD}
  v_mov_b32 v250, s40
  v_mov_b32 v251, 1
  v_mov_b32 v252, {DBG_GT}
  s_mov_b64 exec, 1
  global_atomic_add v248, v250, v251, s[{sDbg}:{sDbg+1}] sc0 sc1
  global_atomic_add v249, v252, v251, s[{sDbg}:{sDbg+1}] sc0 sc1
  s_mov_b64 exec, -1
L_tk_w:''')
emit_ln(a, 2, SC)
emit_ring_init(a, 2, SC)
a(f'''  s_cmp_lg_u32 s{T.sW}, 0
  s_cbranch_scc1 L_fl_w
  s_lshl_b32 s40, s2, 6
  s_add_u32 s40, s40, {FLG}
  v_lshlrev_b32 v1, 2, v0
  v_mov_b32 v2, 0
  s_mov_b32 exec_lo, 0xffff
  s_mov_b32 exec_hi, 0
  buffer_store_dword v2, v1, {WS}, s40 offen sc1
  s_mov_b64 exec, 1
  s_waitcnt vmcnt(0)
  v_mov_b32 v1, {LDS_TK}
  ds_write_b64 v1, v[248:249]
  s_waitcnt lgkmcnt(0)''')
a(f'''  s_mov_b64 exec, -1
L_fl_w:
  s_waitcnt vmcnt(0)
  s_barrier
  s_cmp_lg_u32 s{T.sW}, 0
  s_cbranch_scc1 L_ar_w
  v_mov_b32 v4, {DBG_ARR}
  v_mov_b32 v2, 1
  s_mov_b64 exec, 1
  global_atomic_add v4, v2, s[{sDbg}:{sDbg+1}] sc1
  s_mov_b64 exec, -1
L_ar_w:
  v_mov_b32 v1, {LDS_TK}
  ds_read_b64 v[2:3], v1
  s_waitcnt lgkmcnt(0)
  v_readfirstlane_b32 s{sTk}, v2
  v_readfirstlane_b32 s{sGt}, v3
  s_mov_b32 s{sMode}, 0
  s_cmp_ge_u32 s{sXcc}, 4
  s_cbranch_scc1 L_wait
  s_cmp_ge_u32 s{sTk}, 32
  s_cbranch_scc1 L_wait
  s_mov_b32 s{c.sX}, s{sXcc}
  s_mov_b32 s{c.sJ}, s{sTk}
L_setup:
  s_load_dwordx4 s[64:67], s[0:1], {A_MEM0}
  s_load_dwordx4 s[68:71], s[0:1], {A_WK}
  s_load_dwordx2 s[72:73], s[0:1], {A_WO}
  s_mov_b32 s{c.sPar}, {cfg['par'] if cfg['par'] < 2 else 0}
  s_waitcnt lgkmcnt(0)''')
emit_ring_base(a, 50, 52)
srd(a, c.sRG, 's50', 's51', 4*MB)
srd(a, c.sT0, 's66', 's67', 8*MB); srd(a, c.sT0+4, 's68', 's69', 8*MB)
srd(a, c.sT0+8, 's70', 's71', 8*MB); srd(a, c.sT0+12, 's72', 's73', 8*MB)
srd(a, 76, 's64', 's65', 16384)
emit_setup(a)
emit_weights(a)
def emit_wait_all(p, cand):
    a(f'''{p}:
  s_cmp_lg_u32 s{c.sW}, 0
  s_cbranch_scc1 {p}_w
  v_mov_b32 v17, {DBG_ARR}
  s_mov_b32 s{sBnd}, {4*BOUND}
{p}_p:
  global_load_dword v18, v17, s[{sDbg}:{sDbg+1}] sc1
  s_waitcnt vmcnt(0)
  v_readfirstlane_b32 s40, v18
  s_nop 0
  s_cmp_ge_u32 s40, 256
  s_cbranch_scc1 {p}_ok
  s_sub_u32 s{sBnd}, s{sBnd}, 1
  s_cbranch_scc0 {p}_p
  v_mov_b32 v18, -1
  s_branch {p}_pub
{p}_ok:
  v_mov_b32 v16, {DBG_XCD}
  global_load_dwordx4 v[20:23], v16, s[{sDbg}:{sDbg+1}] sc1
  global_load_dwordx4 v[24:27], v16, s[{sDbg}:{sDbg+1}] offset:16 sc1
  s_waitcnt vmcnt(0)
  v_min_u32 v20, v20, v21
  v_min_u32 v22, v22, v23
  v_min_u32 v24, v24, v25
  v_min_u32 v26, v26, v27
  v_min_u32 v20, v20, v22
  v_min_u32 v24, v24, v26
  v_min_u32 v18, v20, v24
{p}_pub:
  v_mov_b32 v16, {LDS_TK}
  ds_write_b32 v16, v18 offset:8
  s_waitcnt lgkmcnt(0)
{p}_w:
  s_barrier
  v_mov_b32 v16, {LDS_TK}
  ds_read_b32 v17, v16 offset:8
  s_waitcnt lgkmcnt(0)
  v_readfirstlane_b32 s40, v17
  s_nop 0
  s_cmp_eq_u32 s40, -1
  s_cbranch_scc1 L_fail
  s_cmp_ge_u32 s40, {32 if not cfg['force'] else 33}
  s_cbranch_scc0 L_glob''')
    dstamp(2, 160)
    if cand: a('  s_branch L_chain_l')
    else:
        a(f'''  s_sub_u32 s{sQ}, s{sXcc}, 4
  s_and_b32 s{sQ}, s{sQ}, 3
  s_branch L_tasks''')
a(f'''  s_cmp_eq_u32 s{sMode}, 2
  s_cbranch_scc1 L_chain_g''')
emit_wait_all('L_waitc', True)
emit_wait_all('L_wait', False)
a(f'''L_glob:
  s_cmp_ge_u32 s{sGt}, 128
  s_cbranch_scc1 L_glob_t
  s_lshr_b32 s{c.sX}, s{sGt}, 5
  s_and_b32 s{c.sJ}, s{sGt}, 31
  s_mov_b32 s{sMode}, 2
  s_branch L_setup
L_glob_t:
  s_sub_u32 s{sQ}, s{sGt}, 128
  s_lshr_b32 s{sQ}, s{sQ}, 5
  s_and_b32 s{sQ}, s{sQ}, 3
  s_branch L_tasks''')

sPub = 48; sFo = 49
def after_a(a, pfx):
    if cfg['dbgt']:
        for wd, stp in ((4, 8), (5, 32)):
            l = a.label('L_cs')
            a(f'  s_cmp_eq_u32 s{c.sS}, {stp}\n  s_cbranch_scc0 {l}')
            dstamp(wd, 160, cond=f'  s_cmp_lg_u32 s{sPub}, 0')
            a(f'{l}:')
    a(f'''  s_cmp_eq_u32 s{sPub}, 0
  s_cbranch_scc1 {pfx}_npub
  s_sub_u32 s{c.sT}, s{c.sS}, 1
  s_max_i32 s{c.sT}, s{c.sT}, 0
  v_mov_b32 v254, s{c.sT}
  s_mov_b32 s{sFo}, {FLG + F_PROG}
  buffer_store_dword v254, off, s[{c.sWS}:{c.sWS+3}], s{sFo} sc1
{pfx}_npub:
  s_cmp_lg_u32 s{c.sW}, 3
  s_cbranch_scc1 {pfx}_nkv
  s_and_b32 s{c.sT}, s{c.sS}, 7
  s_cmp_lg_u32 s{c.sT}, 5
  s_cbranch_scc1 {pfx}_nkv
  s_add_u32 s{c.sT}, s{c.sS}, 3
  s_lshr_b32 s{c.sT}, s{c.sT}, 3
  s_min_u32 s{c.sT}, s{c.sT}, 7
  s_lshl_b32 s{c.sT}, s{c.sT}, 7
  s_add_u32 s{sFo}, s{c.sT}, {FLG + F_KV}
  buffer_load_dword v253, off, s[{c.sWS}:{c.sWS+3}], s{sFo} sc1
{pfx}_nkv:''')
def pre_red1(a, pfx, fail):
    nk = 0 if cfg['nokv'] else 8
    a(f'''  s_cmp_lg_u32 s{c.sW}, 3
  s_cbranch_scc1 {pfx}_kvok
  s_and_b32 s{c.sT}, s{c.sS}, 7
  s_cmp_lg_u32 s{c.sT}, 5
  s_cbranch_scc1 {pfx}_kvok
  s_waitcnt vmcnt({nk})
  s_mov_b32 s{c.sBound}, {BOUND}
{pfx}_kvp:
  v_readfirstlane_b32 s{c.sT}, v253
  s_nop 0
  s_cmp_ge_u32 s{c.sT}, 32
  s_cbranch_scc1 {pfx}_kvok
  buffer_load_dword v253, off, s[{c.sWS}:{c.sWS+3}], s{sFo} sc1
  s_waitcnt vmcnt(0)
  s_sub_u32 s{c.sBound}, s{c.sBound}, 1
  s_cbranch_scc0 {pfx}_kvp
  s_branch {fail}
{pfx}_kvok:''')
if not cfg['chainonly']:
    chain.HOOK['after_a'] = after_a; chain.HOOK['pre_red1'] = pre_red1
def stamp(a, k):
    l = a.label('L_st')
    a(f'  s_cmp_eq_u32 s{c.sS}, {cfg["stamp"]}\n  s_cbranch_scc0 {l}\n  s_memtime s[{64+2*k}:{65+2*k}]\n{l}:')
stf = stamp if cfg['stamp'] >= 0 else None
def chain_entry(mode, pfx):
    a(f'''  s_mov_b32 s{sPub}, 0
  s_add_u32 s50, s{c.sX}, s{c.sJ}
  s_cmp_lg_u32 s50, 0
  s_cbranch_scc1 {pfx}_np
  s_cmp_eq_u32 s{c.sW}, 2
  s_cselect_b32 s{sPub}, 1, 0
{pfx}_np:''')
    if cfg['par'] == 2:
        a(f'''  s_add_u32 s50, s{c.sX}, s{c.sJ}
  s_add_u32 s50, s50, s{c.sW}
  s_cmp_lg_u32 s50, 0
  s_cbranch_scc1 {pfx}_npr
  s_mov_b64 exec, 1
  s_mov_b32 s56, 0
  s_mov_b32 s57, 0
  s_waitcnt vmcnt(0)''')
        for i in range(4):
            for par in range(2):
                a(f'''  s_mov_b32 s51, {RC + 3*524288 + (3+8*i)*16384 + par*8192}
  s_memtime s[52:53]
  s_waitcnt lgkmcnt(0)
  buffer_store_dword v{c.vSent}, off, s[{c.sRG}:{c.sRG+3}], s51 sc1
  s_waitcnt vmcnt(0)
  s_memtime s[54:55]
  s_waitcnt lgkmcnt(0)
  s_sub_u32 s54, s54, s52
  s_add_u32 s{56+par}, s{56+par}, s54''')
        a(f'''  s_cmp_lt_u32 s57, s56
  s_cselect_b32 s56, 2, 1
  v_mov_b32 v16, {DBG_PAR}
  v_mov_b32 v17, s56
  global_store_dword v16, v17, s[{sDbg}:{sDbg+1}] sc1
  s_mov_b64 exec, -1
{pfx}_npr:
  v_mov_b32 v16, {DBG_PAR}
  s_mov_b32 s{c.sBound}, {BOUND}
{pfx}_pp:
  global_load_dword v17, v16, s[{sDbg}:{sDbg+1}] sc1
  s_waitcnt vmcnt(0)
  v_readfirstlane_b32 s50, v17
  s_nop 0
  s_cmp_lg_u32 s50, 0
  s_cbranch_scc1 {pfx}_ppok
  s_sub_u32 s{c.sBound}, s{c.sBound}, 1
  s_cbranch_scc0 {pfx}_pp
  s_branch L_fail
{pfx}_ppok:
  s_sub_u32 s50, s50, 1
  s_and_b32 s50, s50, 1
  s_lshl_b32 s50, s50, 13
  v_add_u32 v{c.vCst}, s50, v{c.vCst}
  v_add_u32 v{c.vCld}, s50, v{c.vCld}''')
    if not cfg['chainonly']:
        a(f'''  s_mov_b32 s{sFo}, {FLG + F_KV}
  s_mov_b32 s{c.sBound}, {BOUND}
{pfx}_kv0:
  buffer_load_dword v253, off, s[{c.sWS}:{c.sWS+3}], s{sFo} sc1
  s_waitcnt vmcnt(0)
  v_readfirstlane_b32 s50, v253
  s_nop 0
  s_cmp_ge_u32 s50, 32
  s_cbranch_scc1 {pfx}_kv0ok
  s_sub_u32 s{c.sBound}, s{c.sBound}, 1
  s_cbranch_scc0 {pfx}_kv0
  s_branch L_fail
{pfx}_kv0ok:''')
    if cfg['prof']:
        a('  s_memrealtime s[80:81]\n  s_memtime s[84:85]\n  s_waitcnt lgkmcnt(0)')
    dstamp(3, 160)
    emit_start(a, mode, 76)
    emit_loop(a, mode, pfx, 'L_fail', 'L_chain_done', stamp=stf)
a('L_chain_l:')
if cfg['nochain']:
    a(f'''  s_mov_b32 s50, {FLG + F_PROG}
  v_mov_b32 v16, 64
  buffer_store_dword v16, off, s[4:7], s50 sc1
  s_waitcnt vmcnt(0)
  s_branch L_end''')
chain_entry('L', 'LL')
a('L_chain_g:')
chain_entry('G', 'LG')
a(f'''L_chain_done:
  s_waitcnt vmcnt(0)
  s_barrier''')
dstamp(6, 160)
if cfg['prof']:
    a(f'''  s_memrealtime s[82:83]
  s_memtime s[86:87]
  s_waitcnt lgkmcnt(0)
  s_lshl_b32 s50, s{c.sX}, 5
  s_add_u32 s50, s50, s{c.sJ}
  s_lshl_b32 s50, s50, 2
  s_add_u32 s50, s50, s{c.sW}
  s_lshl_b32 s50, s50, 6
  s_add_u32 s50, s50, {200*MB}
  v_mov_b32 v1, s50
  s_sub_u32 s86, s86, s84''')
    for k in range(8): a(f'  v_mov_b32 v{2+k}, s{64+2*k}')
    a(f'''  v_mov_b32 v10, s86
  v_mov_b32 v11, s{sStamp}
  v_mov_b32 v12, s80
  v_mov_b32 v13, s82
  s_mov_b64 exec, 1
  buffer_store_dwordx4 v[2:5], v1, s[{c.sWS}:{c.sWS+3}], 0 offen
  buffer_store_dwordx4 v[6:9], v1, s[{c.sWS}:{c.sWS+3}], 0 offen offset:16
  buffer_store_dwordx4 v[10:13], v1, s[{c.sWS}:{c.sWS+3}], 0 offen offset:32
  s_mov_b64 exec, -1''')
a(f'''  s_cmp_lg_u32 s{c.sW}, 0
  s_cbranch_scc1 L_end
  s_mov_b32 s40, {FLG + F_CDONE}
  v_mov_b32 v1, s40
  v_mov_b32 v2, 1
  s_mov_b64 exec, 1
  buffer_atomic_add v2, v1, s[{c.sWS}:{c.sWS+3}], 0 offen sc0 sc1
  s_waitcnt vmcnt(0)
  v_readfirstlane_b32 s40, v2
  s_nop 0
  s_cmp_eq_u32 s40, 127
  s_cbranch_scc0 L_end
  s_mov_b32 s40, {FLG + F_PROG}
  v_mov_b32 v2, 64
  buffer_store_dword v2, off, s[{c.sWS}:{c.sWS+3}], s40 sc1
  s_waitcnt vmcnt(0)
  s_branch L_end''')

def wait_flag(off_const, sreg_idx, target, shift=7):
    l = a.label('L_wf')
    if sreg_idx is None: a(f'  s_mov_b32 s41, {FLG + off_const}')
    else: a(f'  s_lshl_b32 s41, s{sreg_idx}, {shift}\n  s_add_u32 s41, s41, {FLG + off_const}')
    a(f'''  s_cmp_lg_u32 s{T.sW}, 0
  s_cbranch_scc1 {l}_w
  s_mov_b32 s{sBnd}, {BOUND}
{l}_p:
  buffer_load_dword v1, off, {WS}, s41 sc1
  s_waitcnt vmcnt(0)
  v_readfirstlane_b32 s42, v1
  s_nop 0
  s_cmp_ge_u32 s42, {target}
  s_cbranch_scc1 {l}_w
  s_sub_u32 s{sBnd}, s{sBnd}, 1
  s_cbranch_scc0 {l}_p
  v_mov_b32 v1, {DBG_FAIL + 4}
  v_mov_b32 v2, 1
  s_mov_b64 exec, 1
  global_atomic_add v1, v2, s[{sDbg}:{sDbg+1}] sc1
  s_mov_b64 exec, -1
{l}_w:''')
sSig = 35
sBase = 32
a('L_tasks:')
a(f'  s_mov_b32 s{T.sW}, s{c.sW}')
a(f'  s_mov_b32 s{sSig}, -1')
if cfg['dbgt']: a('  s_mov_b32 s70, 15')
a('L_next:')
a(f'''  s_waitcnt vmcnt(0)
  s_barrier
  s_cmp_lg_u32 s{T.sW}, 0
  s_cbranch_scc1 L_next_w
  s_mov_b64 exec, 1''')
if cfg['prof']:
    a(f'''  s_cmp_eq_u32 s{sSig}, -1
  s_cbranch_scc1 L_nprof
  s_memrealtime s[82:83]
  s_memtime s[74:75]
  s_lshl_b32 s40, s{sQ}, 9
  s_add_u32 s40, s40, s{sTkt}
  s_lshl_b32 s40, s40, 5
  s_add_u32 s40, s40, {201*MB}
  s_waitcnt lgkmcnt(0)
  s_sub_u32 s41, s88, s86
  v_mov_b32 v8, s41
  s_sub_u32 s41, s74, s88
  v_mov_b32 v9, s41
  s_sub_u32 s41, s74, s86
  v_mov_b32 v10, s41
  v_mov_b32 v11, 0
  s_add_u32 s41, s40, 16
  buffer_store_dwordx4 v[8:11], off, {WS}, s41
  v_mov_b32 v4, s80
  v_mov_b32 v5, s84
  v_mov_b32 v6, s82
  s_lshl_b32 s41, s{sXcc}, 8
  s_add_u32 s41, s41, s{sTk}
  v_mov_b32 v7, s41
  buffer_store_dwordx4 v[4:7], off, {WS}, s40
L_nprof:''')
if cfg['dbgt']:
    a(f'''  s_memrealtime s[100:101]
  s_waitcnt lgkmcnt(0)
  s_lshl_b32 s40, s70, 2
  v_mov_b32 v1, s40
  v_mov_b32 v2, s100
  global_atomic_umax v1, v2, s[{sDbg}:{sDbg+1}] sc1''')
a(f'''  s_cmp_eq_u32 s{sSig}, -1
  s_cbranch_scc1 L_nosig''')
if cfg['wbl2']: a('  buffer_wbl2 sc1\n  s_waitcnt vmcnt(0)')
a(f'''  s_add_u32 s40, s{sSig}, {FLG}
  v_mov_b32 v1, s40
  v_mov_b32 v2, 1
  buffer_atomic_add v2, v1, {WS}, 0 offen sc1
L_nosig:
  s_lshl_b32 s40, s{sQ}, 5
  s_add_u32 s40, s40, {DBG_QUEUE}
  v_mov_b32 v1, s40
  v_mov_b32 v2, 1
  global_atomic_add v3, v1, v2, s[{sDbg}:{sDbg+1}] sc0 sc1
  s_waitcnt vmcnt(0)
  v_mov_b32 v1, {LDS_TK}
  ds_write_b32 v1, v3 offset:16
  s_waitcnt lgkmcnt(0)
  s_mov_b64 exec, -1
L_next_w:
  s_barrier
  v_mov_b32 v1, {LDS_TK}
  ds_read_b32 v3, v1 offset:16
  s_waitcnt lgkmcnt(0)
  v_readfirstlane_b32 s{sTkt}, v3''')
if cfg['prof']: a('  s_memrealtime s[80:81]\n  s_waitcnt lgkmcnt(0)')
ranges = []
ranges.append((32, 'KV0')); ranges.append((28, 'GU0')); ranges.append((4, 'WOF')); ranges.append((4, 'D0'))
ranges.append((28, 'GU4')); ranges.append((4, 'D4')); ranges.append((32, 'KV4')); ranges.append((32, 'Q'))
ranges.append((31*8, 'AW')); ranges.append((4, 'A31')); ranges.append((16, 'W31'))
start = 0
DW = dict(KV0=8, GU0=9, WOF=9, D0=10, GU4=11, D4=12, KV4=13, Q=14, AW=7, A31=7, W31=7)
for cnt, lab in ranges:
    if cfg['dbgt']: a(f'  s_mov_b32 s70, {DW[lab]}')
    a(f'''  s_sub_u32 s{sIdx}, s{sTkt}, {start}
  s_cmp_lt_u32 s{sTkt}, {start + cnt}
  s_cbranch_scc1 T_{lab}''')
    start += cnt
a('  s_branch L_end')
print('tasks per queue', start)
def mark():
    if cfg['prof']: a('  s_memrealtime s[84:85]\n  s_memtime s[86:87]\n  s_memtime s[88:89]\n  s_waitcnt lgkmcnt(0)')
def mark2():
    if cfg['prof']: a('  s_memtime s[88:89]\n  s_waitcnt lgkmcnt(0)')
a(f'''T_KV0:
  s_and_b32 s{T.sM}, s{sIdx}, 3
  s_lshr_b32 s40, s{sIdx}, 2
  s_branch T_KV
T_KV4:
  s_lshr_b32 s{T.sM}, s{sIdx}, 3
  s_add_u32 s{T.sM}, s{T.sM}, 4
  s_and_b32 s40, s{sIdx}, 7
T_KV:
  s_and_b32 s41, s40, 3
  s_lshl_b32 s{T.sN}, s{sQ}, 2
  s_add_u32 s{T.sN}, s{T.sN}, s41
  s_lshl_b32 s{sSig}, s{T.sM}, 7
  s_add_u32 s{sSig}, s{sSig}, {F_KV}
  s_cmp_ge_u32 s40, 4
  s_cbranch_scc1 T_V''')
emit_gemm_params(a, TY_K)
a(f'  s_mov_b32 s{sBase}, {K}\n  s_mov_b32 s{T.sTy}, 0\n  s_branch G_n')
a(f'''T_Q:
  s_lshr_b32 s{T.sM}, s{sIdx}, 2
  s_and_b32 s41, s{sIdx}, 3
  s_lshl_b32 s{T.sN}, s{sQ}, 2
  s_add_u32 s{T.sN}, s{T.sN}, s41
  s_lshl_b32 s{sSig}, s{T.sM}, 7
  s_add_u32 s{sSig}, s{sSig}, {F_Q}''')
emit_gemm_params(a, TY_Q)
a(f'  s_mov_b32 s{sBase}, {Q}\n  s_mov_b32 s{T.sTy}, 0\n  s_branch G_n')
a(f'''T_GU0:
  s_and_b32 s{T.sM}, s{sIdx}, 3
  s_branch T_GU
T_GU4:
  s_and_b32 s{T.sM}, s{sIdx}, 3
  s_add_u32 s{T.sM}, s{T.sM}, 4
T_GU:
  s_lshr_b32 s41, s{sIdx}, 2
  s_mul_i32 s{T.sN}, s{sQ}, 7
  s_add_u32 s{T.sN}, s{T.sN}, s41
  s_lshl_b32 s{sSig}, s{T.sM}, 7
  s_add_u32 s{sSig}, s{sSig}, {F_GU}''')
emit_gemm_params(a, TY_GU)
a(f'  s_mov_b32 s{T.sTy}, 2\n  s_branch G_n')
a(f'''T_D0:
  s_mov_b32 s{T.sM}, s{sIdx}
  s_branch T_D
T_D4:
  s_add_u32 s{T.sM}, s{sIdx}, 4
T_D:
  s_mov_b32 s{T.sN}, s{sQ}
  s_lshl_b32 s{sSig}, s{T.sM}, 7
  s_add_u32 s{sSig}, s{sSig}, {F_D}''')
wait_flag(F_GU, T.sM, 28)
a('  s_barrier')
emit_gemm_params(a, TY_D)
a(f'  s_mov_b32 s{T.sTy}, 3')
a('G_n:'); mark()
emit_gemm_main(a, False, 'G_n'); mark2()
a(f'''  s_cmp_eq_u32 s{T.sTy}, 2
  s_cbranch_scc1 G_egu
  s_cmp_eq_u32 s{T.sTy}, 3
  s_cbranch_scc1 G_ed''')
emit_epi_kq(a, f's{sBase}', SC); a('  s_branch L_next')
a('G_egu:'); emit_epi_gu(a, SC); a('  s_branch L_next')
a('G_ed:'); emit_epi_d(a, SC); a('  s_branch L_next')
a('T_V:'); emit_gemm_params(a, TY_V); mark(); emit_gemm_main(a, True, 'G_s'); mark2(); emit_epi_v(a, SC); a('  s_branch L_next')
a(f'''T_WOF:
  s_mov_b32 s{sSig}, {F_WOF}
  s_lshl_b32 s{T.sM}, s{sQ}, 5
  s_lshl_b32 s40, s{sIdx}, 3
  s_add_u32 s{T.sM}, s{T.sM}, s40
  s_add_u32 s{T.sN}, s{T.sM}, 8''')
mark()
a('T_WOF_l:')
emit_wo_repack(a, T.sM, SC)
a(f'''  s_add_u32 s{T.sM}, s{T.sM}, 1
  s_cmp_lt_u32 s{T.sM}, s{T.sN}
  s_cbranch_scc1 T_WOF_l
  s_branch L_next''')
a(f'''T_AW:
  s_lshr_b32 s{T.sM}, s{sIdx}, 3        ; block c
  s_and_b32 s40, s{sIdx}, 7
  s_cmp_ge_u32 s40, 4
  s_cbranch_scc1 T_W
  s_branch T_A
T_A31:
  s_mov_b32 s{T.sM}, 31
  s_mov_b32 s40, s{sIdx}
T_A:
  s_lshl_b32 s{sSig}, s{T.sM}, 7
  s_add_u32 s{sSig}, s{sSig}, {F_O}
  s_lshr_b32 s{T.sN}, s40, 1
  s_lshl_b32 s41, s{sQ}, 1
  s_add_u32 s{T.sN}, s{T.sN}, s41
  s_lshl_b32 s{T.sM}, s{T.sM}, 1
  s_and_b32 s40, s40, 1
  s_add_u32 s{T.sM}, s{T.sM}, s40       ; segment
  s_lshr_b32 s{T.sTy}, s{T.sM}, 3''')
wait_flag(F_Q, T.sTy, 16)
a(f'  s_add_u32 s{T.sTy}, s{T.sM}, 1')
l = a.label('L_wp')
a(f'''  s_mov_b32 s41, {FLG + F_PROG}
  s_cmp_lg_u32 s{T.sW}, 0
  s_cbranch_scc1 {l}_w
  s_mov_b32 s{sBnd}, {BOUND}
{l}_p:
  buffer_load_dword v1, off, {WS}, s41 sc1
  s_waitcnt vmcnt(0)
  v_readfirstlane_b32 s42, v1
  s_nop 0
  s_cmp_ge_u32 s42, s{T.sTy}
  s_cbranch_scc1 {l}_w
  s_sub_u32 s{sBnd}, s{sBnd}, 1
  s_cbranch_scc0 {l}_p
  v_mov_b32 v1, {DBG_FAIL + 8}
  v_mov_b32 v2, 1
  s_mov_b64 exec, 1
  global_atomic_add v1, v2, s[{sDbg}:{sDbg+1}] sc1
  s_mov_b64 exec, -1
{l}_w:
  s_barrier''')
mark()
emit_attn(a, T.sM, T.sN, SC)
a('  s_branch L_next')
def wo_waits(sBlk):
    wait_flag(F_WOF, None, 16)
    a(f'  s_lshr_b32 s{T.sTy}, s{sBlk}, 2')
    wait_flag(F_D, T.sTy, 4)
    wait_flag(F_O, sBlk, 16)
    a('  s_barrier')
a(f'''T_W:
  s_mov_b32 s{sSig}, {F_CDONE + 128}
  s_and_b32 s40, s40, 3
  s_lshl_b32 s{T.sN}, s{sQ}, 2
  s_add_u32 s{T.sN}, s{T.sN}, s40
  s_lshl_b32 s{T.sN}, s{T.sN}, 2''')
wo_waits(T.sM)
a(f'  s_lshl_b32 s{T.sM}, s{T.sM}, 2')
mark()
emit_wo_gemm(a, T.sM, T.sN, 4, 4)
a('  s_branch L_next')
a(f'''T_W31:
  s_mov_b32 s{sSig}, {F_CDONE + 128}
  s_mov_b32 s{T.sM}, 31''')
wo_waits(T.sM)
a(f'''  s_lshr_b32 s40, s{sIdx}, 3
  s_lshl_b32 s40, s40, 1
  s_add_u32 s{T.sM}, s40, 124
  s_and_b32 s40, s{sIdx}, 7
  s_lshl_b32 s{T.sN}, s{sQ}, 3
  s_add_u32 s{T.sN}, s{T.sN}, s40
  s_lshl_b32 s{T.sN}, s{T.sN}, 1''')
mark()
emit_wo_gemm(a, T.sM, T.sN, 2, 2, depth=8)
a('  s_branch L_next')
a(f'''L_fail:
  v_mov_b32 v1, {DBG_FAIL}
  v_mov_b32 v2, 1
  s_mov_b64 exec, 1
  global_atomic_add v1, v2, s[{sDbg}:{sDbg+1}] sc1
  s_waitcnt vmcnt(0)
L_end:
  s_endpgm''')
a(kernel_desc(NAME, 512, accum=256))
open(out, 'w').write(a.text())
check_local(out, NAME)
```

```python
from util import *
from layout import *

class C:
    sWS = 4
    sRG = 8
    sT0 = 12
    sW = 28; sX = 29; sJ = 30; sS = 31
    sOA = 32; sOB = 33; sOBr = 34; sOC = 35; sOCr = 36; sSlotA = 37
    sKV = 38; sKM = 39; sBound = 40; sScale = 41; sPar = 42; sU = 43
    sSel = 44
    sMK = 46
    sT = 50
    sMs = 52
    vAld = 1; vAst = 2; vBldq = 3; vBldv = 4; vBst = 5; vCst = 6; vCld = 7
    vKt0 = 8; vKt1 = 9; vVt0 = 10; vVt1 = 11; vIdx = 12; vR1w = 13; vR1wv = 14; vR1r = 15
    vR2w = 244; vR2r = 245; vKMst = 246; vVMst = 247; vLo = 248; vHi = 249; vT = 250; vT2 = 251; vAo = 252
    vWarm = 159; vJunk = 160
    vSent = 240
    vCin = 236
    vA = 16
    vQKV = 32
    vKt = 56
    vVt = 88
    vX = 120
    vVX = 136
    vOne = 144
    vPa = 148
    vPb = 150
    vR1wk = 158
    vSum = 152
    vRi = 156
    vS = 168
    vPV = 180
    vWA = 212
    vWo = 220
    vC = 16
    vP = 32
LDS_R1 = 0; R1_W = 3584; R1_K = 1280; R1_V = 2560; R1_RS = 160
LDS_R2 = 16384; R2_RS = 288; R2_W = 8*R2_RS

def emit_setup(a):
    c = C; t = c.sT
    a(f'''  ; ---- chain role scalars
  s_lshr_b32 s{t}, s{c.sJ}, 2
  s_and_b32 s{t+1}, s{c.sJ}, 3           ; es
  s_lshr_b32 s{t+2}, s{c.sJ}, 4          ; j>>4
  s_and_b32 s{c.sU}, s{c.sJ}, 15         ; u
  s_lshl_b32 s{t+3}, s{t+2}, 2
  s_add_u32 s{t+3}, s{t+3}, s{c.sW}
  s_lshl_b32 s{t+4}, s{c.sX}, 3
  s_add_u32 s{t+5}, s{t+4}, s{t+3}       ; h_att
  s_add_u32 s{t+4}, s{t+4}, s{t}         ; h (qkv)
  s_lshl_b32 s{t+6}, s{c.sX}, 1
  s_add_u32 s{t+6}, s{t+6}, s{t+2}       ; sg''')
    hl, es, jh, hla, h, ha, sg = [f's{t+i}' for i in range(7)]
    T = t + 8
    a(f'  s_lshl_b32 s{T}, s{c.sW}, 12')
    lanesum(a, f'v{c.vAld}', [(5,1,9),(2,2,7),(0,1,6),(4,1,5),(1,1,4)], 0, [f's{T}'])
    a(f'''  s_lshl_b32 s{T}, s{c.sX}, 14
  s_lshl_b32 s{T+1}, s{c.sJ}, 9
  s_add_u32 s{T}, s{T}, s{T+1}
  s_lshl_b32 s{T+1}, s{c.sW}, 7
  s_add_u32 s{T}, s{T}, s{T+1}''')
    lanesum(a, f'v{c.vAst}', [(4,1,6),(0,4,2),(5,1,17)], RA, [f's{T}'])
    a(f'''  s_lshl_b32 s{T}, s{c.sX}, 16
  s_mul_i32 s{T+1}, {hla}, 6144
  s_add_u32 s{T}, s{T}, s{T+1}''')
    lanesum(a, f'v{c.vBldq}', [(1,1,11),(2,2,7),(0,1,6),(4,2,4)], 0, [f's{T}'])
    lanesum(a, f'v{c.vBldv}', [(0,6,3)], 4096, [f's{T}'])
    a(f'''  s_lshl_b32 s{T}, s{c.sX}, 16
  s_mul_i32 s{T+1}, {hl}, 6144
  s_add_u32 s{T}, s{T}, s{T+1}
  s_cmp_eq_u32 s{c.sW}, 3
  s_cselect_b32 s{T+1}, 0, s{c.sW}
  s_lshl_b32 s{T+1}, s{T+1}, 11
  s_add_u32 s{T}, s{T}, s{T+1}
  s_lshl_b32 s{T+1}, {es}, 9
  s_add_u32 s{T}, s{T}, s{T+1}''')
    lanesum(a, f'v{c.vBst}', [(0,6,3)], 0, [f's{T}'])
    a(f'''  s_lshl_b32 s{T}, s{c.sU}, 14
  s_lshl_b32 s{T+1}, s{c.sPar}, 13
  s_add_u32 s{T}, s{T}, s{T+1}
  s_lshl_b32 s{T+1}, {sg}, 9
  s_add_u32 s{T}, s{T}, s{T+1}
  s_lshl_b32 s{T+1}, s{c.sW}, 7
  s_add_u32 s{T}, s{T}, s{T+1}''')
    lanesum(a, f'v{c.vCst}', [(4,1,12),(5,1,6),(0,4,2)], 0, [f's{T}'])
    a(f'''  s_lshr_b32 s{T}, s{c.sJ}, 1
  s_lshl_b32 s{T}, s{T}, 14
  s_lshl_b32 s{T+1}, s{c.sPar}, 13
  s_add_u32 s{T}, s{T}, s{T+1}
  s_and_b32 s{T+1}, s{c.sJ}, 1
  s_lshl_b32 s{T+1}, s{T+1}, 12
  s_add_u32 s{T}, s{T}, s{T+1}
  s_lshl_b32 s{T+1}, s{c.sW}, 7
  s_add_u32 s{T}, s{T}, s{T+1}''')
    lanesum(a, f'v{c.vCld}', [(5,1,11),(4,1,6),(0,4,2)], 0, [f's{T}'])
    a(f'  s_lshl_b32 s{T}, {ha}, 13')
    lanesum(a, f'v{c.vKt0}', [(0,6,4)], K, [f's{T}'])
    a(f'  v_add_u32 v{c.vKt1}, 4096, v{c.vKt0}')
    lanesum(a, f'v{c.vVt0}', [(0,6,4)], VT, [f's{T}'])
    a(f'  v_add_u32 v{c.vVt1}, 4096, v{c.vVt0}')
    a(f'''  s_lshl_b32 s{T}, {ha}, 13
  s_lshl_b32 s{T+1}, s{c.sU}, 9
  s_add_u32 s{T}, s{T}, s{T+1}''')
    lanesum(a, f'v{c.vWarm}', [(0,3,6)], K + (2 << 18), [f's{T}'])
    a(f'''  v_bfe_u32 v255, v0, 3, 1
  v_mul_u32_u24 v255, {(VT - K - (1 << 18)) >> 8}, v255
  v_lshl_add_u32 v{c.vWarm}, v255, 8, v{c.vWarm}''')
    a(f'  s_lshl_b32 s{T}, {ha}, 11')
    lanesum(a, f'v{c.vKMst}', [(2,2,7),(0,1,6),(4,2,4)], KM, [f's{T}'])
    lanesum(a, f'v{c.vVMst}', [(0,6,3)], VM, [f's{T}'])
    a(f'  s_mul_i32 s{T}, s{c.sW}, {R1_W}')
    lanesum(a, f'v{c.vR1w}', [(4,2,8),(4,2,6),(0,4,2)], LDS_R1, [f's{T}'])
    a(f'  v_add_u32 v{c.vR1wk}, {R1_K}, v{c.vR1w}')
    lanesum(a, f'v{c.vR1wv}', [(0,6,4)], LDS_R1 + R1_V, [f's{T}'])
    a(f'  s_mul_i32 s{T}, s{c.sW}, {R1_K}')
    lanesum(a, f'v{c.vR1r}', [(3,3,7),(3,3,5),(0,3,4)], LDS_R1, [f's{T}'])
    lanesum(a, f'v{c.vT}', [(0,6,4)], LDS_R1 + R1_V)
    a(f'''  s_cmp_eq_u32 s{c.sW}, 2
  s_cselect_b64 vcc, -1, 0
  v_cndmask_b32 v{c.vR1r}, v{c.vR1r}, v{c.vT}, vcc''')
    a(f'  s_mul_i32 s{T}, s{c.sW}, {R2_W}')
    lanesum(a, f'v{c.vR2w}', [(4,2,9),(4,2,6),(0,4,2)], LDS_R2, [f's{T}'])
    a(f'  s_mul_i32 s{T}, s{c.sW}, {2*R2_RS}')
    lanesum(a, f'v{c.vR2r}', [(5,1,8),(5,1,5),(0,5,3)], LDS_R2, [f's{T}'])
    a(f'''  v_bfe_u32 v{c.vT}, v0, 1, 1
  v_cmp_eq_u32 vcc, 1, v{c.vT}
  v_mov_b32 v{c.vIdx}, 0x44444444
  v_mov_b32 v{c.vT}, 0xeeeeeeee
  s_nop 1
  v_cndmask_b32 v{c.vIdx}, v{c.vIdx}, v{c.vT}, vcc
  v_cmp_le_u32 vcc, 32, v0
  v_mov_b32 v{c.vT2}, -1
  v_mov_b32 v{c.vT}, 0
  v_mov_b32 v{c.vPa+1}, 0
  v_mov_b32 v{c.vPb}, 0
  s_nop 1''')
    for i in range(4):
        a(f'  v_mov_b32 v{c.vSent+i}, -1')
        a(f'  v_mov_b32 v{c.vOne+i}, 0x3f803f80')
    a(f'''  v_cndmask_b32 v{c.vLo}, v{c.vT}, v{c.vT2}, vcc
  v_mov_b32 v{c.vHi}, 0xfffffffe
  v_cndmask_b32 v{c.vHi}, v{c.vHi}, v{c.vT2}, vcc
  s_mov_b32 s{c.sScale}, 0x3e0293ee      ; 128^-0.5 * log2(e)
  s_mov_b32 s{c.sMK}, 0xcccccccc
  s_mov_b32 s{c.sMK+1}, 0xcccccccc
  s_mov_b32 s{c.sSel}, 0x33333333
  s_mov_b32 s{c.sSel+1}, 0x33333333''')

def emit_weights(a):
    c = C; t = c.sT
    sq, sk, sv, so = c.sT0, c.sT0+4, c.sT0+8, c.sT0+12
    vD, vDo, vRq, vRo = 16, 17, 18, 19
    a(f'''  ; ---- resident weights
  s_lshr_b32 s{t}, s{c.sJ}, 2
  s_lshl_b32 s{t+1}, s{c.sX}, 3
  s_add_u32 s{t}, s{t}, s{t+1}           ; h
  s_lshl_b32 s{t}, s{t}, 8
  s_and_b32 s{t+1}, s{c.sJ}, 3
  s_lshl_b32 s{t+1}, s{t+1}, 6
  s_add_u32 s{t}, s{t}, s{t+1}           ; h*256 + es*64
  s_lshl_b32 s{t+1}, s{c.sW}, 21         ; 256w rows * 8192
  s_add_u32 s{t}, s{t}, s{t+1}''')
    lanesum(a, f'v{vD}', [(2,4,13),(0,2,4)], 0, [f's{t}'])
    a(f'''  s_lshr_b32 s{t}, s{c.sJ}, 4
  s_lshl_b32 s{t}, s{t}, 2
  s_add_u32 s{t}, s{t}, s{c.sW}
  s_lshl_b32 s{t+1}, s{c.sX}, 3
  s_add_u32 s{t}, s{t}, s{t+1}           ; h_att
  s_lshl_b32 s{t}, s{t}, 18              ; *128*2048
  s_and_b32 s{t+1}, s{c.sJ}, 15
  s_lshl_b32 s{t+1}, s{t+1}, 7
  s_add_u32 s{t}, s{t}, s{t+1}''')
    lanesum(a, f'v{vDo}', [(3,3,11),(0,3,4)], 0, [f's{t}'])
    a(f'  s_lshl_b32 s{t+2}, s{c.sW}, 15')
    lanesum(a, f'v{vRq}', [(5,1,10),(4,1,8),(2,1,6),(3,1,9),(0,2,3)], 0, [f's{t+2}'])
    lanesum(a, f'v{vRo}', [(4,1,11),(5,1,9),(2,1,7),(3,1,12),(0,2,3)], 16384, [f's{t+2}'])
    def dma(srdr, voff, ldsoff, stride):
        a(f'  s_add_u32 s{t+3}, s{t+2}, {ldsoff}\n  s_mov_b32 s{t+4}, 0')
        for i in range(16):
            a(f'''  s_mov_b32 m0, s{t+3}
  s_add_u32 s{t+3}, s{t+3}, 1024
  buffer_load_dwordx4 v{voff}, s[{srdr}:{srdr+3}], s{t+4} offen lds
  s_add_u32 s{t+4}, s{t+4}, {stride}''')
    def rd_qkv(mat, ldsoff):
        for tt in range(2):
            for b in range(4):
                for ip in range(4):
                    r = ((2*mat + tt)*4 + b)*8 + 2*ip
                    off = ldsoff + (64*b + 32*(ip >> 1) + 2*(ip & 1))*64 + tt*32
                    a(f'  ds_read_b64_tr_b16 a[{r}:{r+1}], v{vRq} offset:{off}')
    dma(sq, vD, 0, 131072); dma(sk, vD, 16384, 131072)
    a('  s_waitcnt vmcnt(16)'); rd_qkv(0, 0)
    a('  s_waitcnt vmcnt(0)'); rd_qkv(1, 16384)
    a('  s_waitcnt lgkmcnt(0)')
    dma(sv, vD, 0, 131072); dma(so, vDo, 16384, 16384)
    a('  s_waitcnt vmcnt(16)'); rd_qkv(2, 0)
    a('  s_waitcnt vmcnt(0)')
    for tl in range(4):
        for b in range(2):
            for ip in range(4):
                r = 192 + (tl*2 + b)*8 + 2*ip
                off = (64*b + 8*(ip >> 1) + 2*(ip & 1))*128 + 32*tl
                a(f'  ds_read_b64_tr_b16 a[{r}:{r+1}], v{vRo} offset:{off}')
    a('  s_waitcnt lgkmcnt(0)\n  s_barrier')

def kt_loads(sreg):
    c = C; L = []
    if OPT['nok']: return L
    for tt in range(2):
        for ks in range(4):
            r = c.vKt + (tt*4 + ks)*4
            L.append(f'buffer_load_dwordx4 {vr(r,4)}, v{c.vKt0+tt}, s[{c.sWS}:{c.sWS+3}], s{sreg} offen offset:{ks*1024}')
    return L
def vt_loads(sreg):
    c = C; L = []
    for tau in range(8):
        r = c.vVt + tau*4
        L.append(f'buffer_load_dwordx4 {vr(r,4)}, v{c.vVt0 + (tau >> 2)}, s[{c.sWS}:{c.sWS+3}], s{sreg} offen offset:{(tau & 3)*1024}')
    return L

def km_store(a, sc, lab, wait=False):
    c = C
    a(f'  s_cmp_ge_u32 s{c.sU}, 8\n  s_cbranch_scc1 {lab}_none')
    for p in range(8):
        a(f'  s_cmp_eq_u32 s{c.sU}, {p}\n  s_cbranch_scc0 {lab}_n{p}')
        if p < 4:
            a(f'''  s_mov_b64 exec, s[{c.sMK}:{c.sMK+1}]
  buffer_store_dwordx4 {vr(c.vX+4*p,4)}, v{c.vKMst}, s[{c.sWS}:{c.sWS+3}], s{c.sKM} offen offset:{p*512}{sc}''')
        else:
            es = p - 4
            a(f'  buffer_store_dwordx2 {vr(c.vVX+2*es,2)}, v{c.vVMst}, s[{c.sWS}:{c.sWS+3}], s{c.sKM} offen offset:{es*512}{sc}')
        a(f'  s_mov_b64 exec, -1')
        if wait: a('  s_waitcnt vmcnt(1)')
        a(f'  s_branch {lab}_done\n{lab}_n{p}:')
    a(f'{lab}_none:')
    if wait: a('  s_waitcnt vmcnt(0)')
    a(f'{lab}_done:')

def poll(a, lab, loads, regs, fail, bound, shadow=None, extra=()):
    c = C
    a(f'  s_mov_b32 s{c.sBound}, {bound}')
    for l, r in loads: a('  ' + l)
    if shadow: shadow()
    else: a('  s_waitcnt vmcnt(0)')
    a(f'{lab}_chk:')
    umax_chain(a, c.vT, regs)
    a(f'''  v_cmp_eq_u32 vcc, -1, v{c.vT}
  s_cbranch_vccz {lab}_ok
  s_waitcnt vmcnt(0)''')
    allp = list(loads) + list(extra)
    for g0 in range(0, len(allp), 4):
        grp = allp[g0:g0+4]
        for k, (l, r) in enumerate(grp): a(f'  v_cmp_eq_u32 s[{c.sMs+2*k}:{c.sMs+2*k+1}], -1, v{r}')
        for k, (l, r) in enumerate(grp): a(f'  s_mov_b64 exec, s[{c.sMs+2*k}:{c.sMs+2*k+1}]\n  {l}')
        a('  s_mov_b64 exec, -1')
    a(f'''  s_waitcnt vmcnt(0)
  s_sub_u32 s{c.sBound}, s{c.sBound}, 1
  s_cbranch_scc0 {lab}_chk
  s_branch {fail}
{lab}_ok:''')

def emit_loop(a, mode, pfx, fail, done, bound=200000, stamp=None):
    c = C; sc = ' sc1' if mode == 'G' else ''
    RG = f's[{c.sRG}:{c.sRG+3}]'
    L = lambda n: f'{pfx}_{n}'
    st = (lambda k: stamp(a, k)) if stamp else (lambda k: None)
    a(f'{L("step")}:')
    a(f'''  s_and_b32 s{c.sT}, s{c.sS}, 3
  s_lshl_b32 s{c.sOA}, s{c.sT}, 16
  s_lshl_b32 s{c.sT+1}, s{c.sX}, 14
  s_add_u32 s{c.sOA}, s{c.sOA}, s{c.sT+1}
  s_add_u32 s{c.sOA}, s{c.sOA}, {RA}
  s_lshl_b32 s{c.sOB}, s{c.sT}, 18
  s_xor_b32 s{c.sOBr}, s{c.sOB}, {2 << 18}
  s_add_u32 s{c.sOB}, s{c.sOB}, {RB}
  s_add_u32 s{c.sOBr}, s{c.sOBr}, {RB}
  s_lshl_b32 s{c.sOC}, s{c.sT}, 18
  s_xor_b32 s{c.sOCr}, s{c.sOC}, {2 << 18}
  s_add_u32 s{c.sT}, s{c.sS}, 1
  s_and_b32 s{c.sT}, s{c.sT}, 3
  s_lshl_b32 s{c.sSlotA}, s{c.sT}, 16
  s_lshl_b32 s{c.sKV}, s{c.sS}, 18
{'  s_mov_b32 s%d, 0' % c.sKV if OPT['kvsame'] else ''}
  s_lshl_b32 s{c.sKM}, s{c.sS}, 16
  v_xor_b32 v{c.vAo}, s{c.sSlotA}, v{c.vAst}''')
    for i in range(24): a(f'  v_mov_b32 v{c.vQKV+i}, 0')
    if not OPT['zB']:
        for i in range(16): a(f'  v_mov_b32 v{c.vWo+i}, 0')
    st(0)
    loads = [(f'buffer_load_dwordx4 {vr(c.vA+4*b,4)}, v{c.vAld}, {RG}, s{c.sOA} offen offset:{b*1024} sc1', c.vA+4*b) for b in range(4)]
    delay(a, OPT['preA'])
    if OPT['ackA']: a('  s_waitcnt vmcnt(0)')
    poll(a, L('pa'), loads, [r for l, r in loads], fail, bound)
    st(1)
    if HOOK.get('after_a'): HOOK['after_a'](a, pfx)
    kl = (vt_loads(c.sKV) if OPT['kvmove'] else kt_loads(c.sKV)) if not OPT['nokv'] else []
    def qpost(p):
        d0 = c.vQKV + 8*p; d1 = d0 + 4; o = []
        if p < 2:
            o.append(f'v_pk_add_f32 {vr(d0,2)}, {vr(d0,2)}, {vr(d0+2,2)}')
            o.append(f'v_pk_add_f32 {vr(d1,2)}, {vr(d1,2)}, {vr(d1+2,2)}')
            ad = c.vR1w if p == 0 else c.vR1wk
            for i in range(2): o.append(f'ds_write2_b32 v{ad}, v{d0+i}, v{d1+i} offset0:{i*R1_RS//4} offset1:{i*R1_RS//4 + 16}')
        else:
            o.append(f'v_pk_add_f32 {vr(d0,2)}, {vr(d0,2)}, {vr(d0+2,2)}')
            o.append(f'v_pk_add_f32 {vr(d0+2,2)}, {vr(d1,2)}, {vr(d1+2,2)}')
            o.append(f'ds_write_b128 v{c.vR1wv}, {vr(d0,4)}')
        return o
    for p in range(3):
        if p == 0: side = ([[x] for x in kl] + [[]]*8) if not OPT['vspread'] else [[] for _ in range(8)]
        else:
            q = qpost(p-1)
            side = [[], [], [], [], [q[0]], [q[1]], [q[2]], [q[3]]]
        if OPT['vspread'] and kl:
            sl = {1: [(0,0),(0,2),(0,4),(0,6),(1,0),(1,2),(2,0),(2,2)], 2: [(0,0),(0,3),(0,6),(1,1),(1,5),(2,0),(2,2),(2,5)]}[OPT['vspread']]
            for (pp, nn), x in zip(sl, kl):
                if pp == p: side[nn] = [x] + side[nn]
        n = 0
        for b in range(4):
            for t in (2*p, 2*p+1):
                w = (t*4 + b)*8
                a(f'  v_smfmac_f32_16x16x64_bf16 {vr(c.vQKV+4*t,4)}, {vr(c.vA+4*b,4)}, {ar(w,8)}, v{c.vIdx}')
                if p > 0 and n == 3: a('  s_nop 3')
                for x in (side[n] if n < len(side) else []): a('  ' + x)
                n += 1
    a('  s_nop 7')
    for x in qpost(2): a('  ' + x)
    if HOOK.get('pre_red1'): HOOK['pre_red1'](a, pfx, fail)
    a('  s_waitcnt lgkmcnt(0)\n  s_barrier')
    st(2)
    a(f'  s_cmp_eq_u32 s{c.sW}, 3\n  s_cbranch_scc1 {L("nob")}')
    for w in range(4): a(f'  ds_read_b128 {vr(c.vA+4*w,4)}, v{c.vR1r} offset:{w*R1_W}')
    a('  s_waitcnt lgkmcnt(2)')
    a(f'  v_pk_add_f32 {vr(c.vA,2)}, {vr(c.vA,2)}, {vr(c.vA+4,2)}\n  v_pk_add_f32 {vr(c.vA+2,2)}, {vr(c.vA+2,2)}, {vr(c.vA+6,2)}')
    a('  s_waitcnt lgkmcnt(0)')
    a(f'  v_pk_add_f32 {vr(c.vA+8,2)}, {vr(c.vA+8,2)}, {vr(c.vA+12,2)}\n  v_pk_add_f32 {vr(c.vA+10,2)}, {vr(c.vA+10,2)}, {vr(c.vA+14,2)}')
    a(f'  v_pk_add_f32 {vr(c.vA,2)}, {vr(c.vA,2)}, {vr(c.vA+8,2)}\n  v_pk_add_f32 {vr(c.vA+2,2)}, {vr(c.vA+2,2)}, {vr(c.vA+10,2)}')
    a(f'''  v_cvt_pk_bf16_f32 v{c.vA+4}, v{c.vA}, v{c.vA+1}
  v_cvt_pk_bf16_f32 v{c.vA+5}, v{c.vA+2}, v{c.vA+3}
  buffer_store_dwordx2 {vr(c.vA+4,2)}, v{c.vBst}, {RG}, s{c.sOB} offen{sc}''')
    if not OPT['w3rst']:
        a(f'''  buffer_store_dwordx2 {vr(c.vSent,2)}, v{c.vBst}, {RG}, s{c.sOBr} offen{sc}
{L("nob")}:''')
    else:
        a(f'''  s_branch {L("nob2")}
{L("nob")}:
  s_add_u32 s{c.sT}, s{c.sOBr}, 4096
  buffer_store_dwordx2 {vr(c.vSent,2)}, v{c.vBst}, {RG}, s{c.sOBr} offen{sc}
  buffer_store_dwordx2 {vr(c.vSent,2)}, v{c.vBst}, {RG}, s{c.sOBr} offen offset:2048{sc}
  buffer_store_dwordx2 {vr(c.vSent,2)}, v{c.vBst}, {RG}, s{c.sT} offen{sc}
{L("nob2")}:''')
    if OPT['zB']:
        for i in range(16): a(f'  v_mov_b32 v{c.vWo+i}, 0')
    st(3)
    xl = [(f'buffer_load_dwordx4 {vr(c.vX+4*es,4)}, v{c.vBldq}, {RG}, s{c.sOB} offen offset:{es*512} sc1', c.vX+4*es) for es in range(4)]
    vl_ = [(f'buffer_load_dwordx2 {vr(c.vVX+2*es,2)}, v{c.vBldv}, {RG}, s{c.sOB} offen offset:{es*512} sc1', c.vVX+2*es) for es in range(4)]
    delay(a, OPT['preB'])
    if OPT['ackB']: a('  s_waitcnt vmcnt(0)')
    def vcheck(lab):
        a(f'''  s_waitcnt vmcnt(0)
  s_mov_b32 s{c.sBound}, {bound}
{lab}:''')
        umax_chain(a, c.vT, [r for l, r in vl_])
        a(f'''  v_cmp_eq_u32 vcc, -1, v{c.vT}
  s_cbranch_vccz {lab}_ok''')
        for k, (l, r) in enumerate(vl_): a(f'  v_cmp_eq_u32 s[{c.sMs+2*k}:{c.sMs+2*k+1}], -1, v{r}')
        for k, (l, r) in enumerate(vl_): a(f'  s_mov_b64 exec, s[{c.sMs+2*k}:{c.sMs+2*k+1}]\n  {l}')
        a(f'''  s_mov_b64 exec, -1
  s_waitcnt vmcnt(0)
  s_sub_u32 s{c.sBound}, s{c.sBound}, 1
  s_cbranch_scc0 {lab}
  s_branch {fail}
{lab}_ok:''')
    if OPT['splitB']:
        def shadowB():
            for l, r in vl_: a('  ' + l)
            a('  s_waitcnt vmcnt(4)')
        poll(a, L('pb'), xl, [r for l, r in xl], fail, bound, shadow=shadowB, extra=vl_)
    else:
        poll(a, L('pb'), xl + vl_, [r for l, r in xl + vl_], fail, bound)
    st(4)
    a(f'  s_cmp_eq_u32 s{c.sS}, 63\n  s_cbranch_scc1 {L("last")}')
    S0, S1, S2 = c.vS, c.vS+4, c.vS+8
    sidel = []
    kmsc = sc if mode == 'G' else KM_SC
    if OPT['kmx'] and not OPT['nokm']:
        for p in range(8):
            sidel.append(f's_cmp_eq_u32 s{c.sU}, {p}')
            if p < 4:
                sidel.append(f's_cselect_b64 exec, s[{c.sMK}:{c.sMK+1}], 0')
                sidel.append(f'buffer_store_dwordx4 {vr(c.vX+4*p,4)}, v{c.vKMst}, s[{c.sWS}:{c.sWS+3}], s{c.sKM} offen offset:{p*512}{kmsc}')
            else:
                sidel.append(f's_cselect_b64 exec, -1, 0')
                sidel.append(f'buffer_store_dwordx2 {vr(c.vVX+2*(p-4),2)}, v{c.vVMst}, s[{c.sWS}:{c.sWS+3}], s{c.sKM} offen offset:{(p-4)*512}{kmsc}')
    wl = []
    if OPT['warm'] and not OPT['nokv']:
        wl = ['s_mov_b64 exec, 0xffff', f'buffer_load_dword v{c.vJunk}, v{c.vWarm}, s[{c.sWS}:{c.sWS+3}], s{c.sKV} offen']
    ksh = []
    if OPT['kpos'] == 1 and OPT['kvmove'] and not OPT['nokv']:
        a(f'  s_add_u32 s{c.sT}, s{c.sKV}, {1 << 18}')
        ksh = kt_loads(c.sT)
    assert not (ksh and OPT['kmx'])
    if not ksh:
        sidel += wl
        if sidel: sidel.append('s_mov_b64 exec, -1')
    n = 0; per = (len(sidel) + 11) // 12
    for ks in range(4):
        q = vr(c.vX+4*ks, 4)
        for ti, ins in enumerate((f'v_mfma_f32_16x16x32_bf16 {vr(S2,4)}, {q}, {q}, {0 if ks == 0 else vr(S2,4)}',
                    f'v_mfma_f32_16x16x32_bf16 {vr(S0,4)}, {vr(c.vKt+4*ks,4)}, {q}, {0 if ks == 0 else vr(S0,4)}',
                    f'v_mfma_f32_16x16x32_bf16 {vr(S1,4)}, {vr(c.vKt+16+4*ks,4)}, {q}, {0 if ks == 0 else vr(S1,4)}')):
            a('  ' + ins)
            if ksh and n == 0 and wl:
                for x in wl + ['s_mov_b64 exec, -1']: a('  ' + x)
            if ksh and ti > 0: a('  ' + ksh[(ti-1)*4 + ks])
            if n < 11:
                for x in sidel[n*per:(n+1)*per]: a('  ' + x)
            n += 1
    for x in sidel[11*per:]: a('  ' + x)
    T, T2 = c.vT, c.vT2
    P = c.vP
    if OPT['splitB']: vcheck(L('pv'))
    if OPT['kvmove'] and OPT['kpos'] == 0:
        a(f'  s_add_u32 s{c.sT}, s{c.sKV}, {1 << 18}')
        kn = kt_loads(c.sT) if not OPT['nokv'] else []
    else: kn = []
    if OPT['crst']: a(f'  buffer_store_dword v{c.vSent}, v{c.vCst}, {RG}, s{c.sOCr} offen sc1')
    for x in kn[:4]: a('  ' + x)
    a(f'''  s_mov_b64 vcc, s[{c.sSel}:{c.sSel+1}]
  s_nop {5 if not kn else 1}
  v_max3_f32 v{T}, v{S2+2}, v{S2+3}, v{S0}
  v_max3_f32 v{T}, v{T}, v{S0+1}, v{S0+2}
  v_max3_f32 v{T}, v{T}, v{S0+3}, v{S1}
  v_max3_f32 v{T}, v{T}, v{S1+1}, v{S1+2}
  v_max_f32 v{T}, v{T}, v{S1+3}
  v_mov_b32 v{T2}, v{T}
  s_nop 1
  v_permlane32_swap_b32 v{T}, v{T2}
  v_max_f32 v{T}, v{T}, v{T2}
  v_mov_b32 v{T2}, v{T}
  s_nop 1
  v_permlane16_swap_b32 v{T}, v{T2}
  v_max_f32 v{T}, v{T}, v{T2}
  v_mul_f32 v{T}, s{c.sScale}, v{T}
  v_fma_f32 v{S2+2}, v{S2+2}, s{c.sScale}, -v{T}
  v_fma_f32 v{S2+3}, v{S2+3}, s{c.sScale}, -v{T}
  v_exp_f32 v{S2+2}, v{S2+2}
  v_exp_f32 v{S2+3}, v{S2+3}
  v_fma_f32 v{S0}, v{S0}, s{c.sScale}, -v{T}
  v_cvt_pk_bf16_f32 v{c.vPa}, v{S2+2}, v{S2+3}
  v_cvt_pk_bf16_f32 v{c.vPb+1}, v{S2+2}, v{S2+3}
  v_fma_f32 v{S0+1}, v{S0+1}, s{c.sScale}, -v{T}
  v_fma_f32 v{S0+2}, v{S0+2}, s{c.sScale}, -v{T}''')
    for x in kn[4:]: a('  ' + x)
    side = [f'v_fma_f32 v{S0+i}, v{S0+i}, s{c.sScale}, -v{T}' for i in range(3, 8)]
    side += [f'v_exp_f32 v{S0+i}, v{S0+i}' for i in range(8)]
    side += ['s_nop 0'] + [f'v_cvt_pk_bf16_f32 v{P+i}, v{S0+2*i}, v{S0+2*i+1}' for i in range(4)]
    def x16(tau):
        es, tp = tau >> 1, tau & 1
        return f'v_mfma_f32_16x16x16_bf16 {vr(c.vPV+4*tau,4)}, {vr(c.vVX+2*es,2)}, {vr(c.vPb if tp else c.vPa,2)}, 0'
    k = 0
    a(f'  v_mfma_f32_16x16x16_bf16 {vr(c.vSum,4)}, {vr(c.vOne,2)}, {vr(c.vPa,2)}, 0')
    for tau in range(8):
        a('  ' + x16(tau))
        m = [2, 2, 1, 1, 1, 1, 1, 1][tau]
        for x in side[k:k+m]: a('  ' + x)
        k += m
    for x in side[k:]: a('  ' + x)
    a('  s_nop 1')
    def x32(tau): return f'v_mfma_f32_16x16x32_bf16 {vr(c.vPV+4*tau,4)}, {vr(c.vVt+4*tau,4)}, {vr(P,4)}, {vr(c.vPV+4*tau,4)}'
    def post(b):
        ops = []
        base = c.vPV + 16*b
        for i in range(8):
            ops.append(f'v_cndmask_b32_dpp v{base+i}, v{base+8+i}, v{base+i}, vcc quad_perm:[0,1,0,1] row_mask:0xf bank_mask:0xf')
        for i in range(4):
            ops.append(f'v_pk_mul_f32 {vr(base+2*i,2)}, {vr(base+2*i,2)}, {vr(c.vRi,2)}')
        for i in range(4):
            ops.append(f'v_cvt_pk_bf16_f32 v{c.vWA+4*b+i}, v{base+2*i}, v{base+2*i+1}')
        return ops
    a(f'  v_mfma_f32_16x16x32_bf16 {vr(c.vSum,4)}, {vr(c.vOne,4)}, {vr(P,4)}, {vr(c.vSum,4)}')
    for tau in range(4): a('  ' + x32(tau))
    a(f'  s_nop 3\n  v_rcp_f32 v{c.vRi}, v{c.vSum}')
    a('  ' + x32(4))
    a('  s_nop 0')
    a('  ' + x32(5))
    a(f'  v_mov_b32_dpp v{c.vRi}, v{c.vRi} quad_perm:[0,1,0,1] row_mask:0xf bank_mask:0xf')
    p0 = post(0)
    a('  ' + x32(6))
    a(f'  v_mov_b32 v{c.vRi+1}, v{c.vRi}')
    for x in p0[0:1]: a('  ' + x)
    a('  ' + x32(7))
    for x in p0[1:]: a('  ' + x)
    a(f'  s_add_u32 s{c.sT}, s{c.sKV}, {1 << 18}')
    vl = vt_loads(c.sT) if not (OPT['nokv'] or OPT['kvmove']) else [None]*8
    a('  s_nop 0')
    p1 = post(1)
    for t in range(4):
        a(f'  v_smfmac_f32_16x16x64_bf16 {vr(c.vWo+4*t,4)}, {vr(c.vWA,4)}, {ar(192+(t*2)*8,8)}, v{c.vIdx}')
        for x in p1[4*t:4*t+4]: a('  ' + x)
    a('  s_nop 1')
    for t in range(4):
        a(f'  v_smfmac_f32_16x16x64_bf16 {vr(c.vWo+4*t,4)}, {vr(c.vWA+4,4)}, {ar(192+(t*2+1)*8,8)}, v{c.vIdx}')
        if vl[0]: a('  ' + vl[2*t]); a('  ' + vl[2*t+1])
    for t in range(4):
        d0 = c.vWo + 4*t
        if t == 0: a('  s_nop 0' if vl[0] else '  s_nop 4')
        if t == 3 and vl[0]: a('  s_nop 1')
        a(f'  v_pk_add_f32 {vr(d0,2)}, {vr(d0,2)}, {vr(d0+2,2)}')
        a(f'  ds_write2_b32 v{c.vR2w}, v{d0}, v{d0+1} offset0:{16*t} offset1:{16*t + R2_RS//4}')
    a('  s_waitcnt lgkmcnt(0)\n  s_barrier')
    st(5)
    Z = c.vA
    for w in range(4): a(f'  ds_read_b64 {vr(Z+2*w,2)}, v{c.vR2r} offset:{w*R2_W}')
    a('  s_waitcnt lgkmcnt(2)')
    a(f'  v_pk_add_f32 {vr(Z,2)}, {vr(Z,2)}, {vr(Z+2,2)}')
    a('  s_waitcnt lgkmcnt(0)')
    a(f'  v_pk_add_f32 {vr(Z+4,2)}, {vr(Z+4,2)}, {vr(Z+6,2)}')
    a(f'  v_pk_add_f32 {vr(Z,2)}, {vr(Z,2)}, {vr(Z+4,2)}')
    a(f'''  v_cvt_pk_f16_f32 v{Z+2}, v{Z}, v{Z+1}
  v_min_u32 v{Z+2}, 0xfffffffe, v{Z+2}
  buffer_store_dword v{Z+2}, v{c.vCst}, {RG}, s{c.sOC} offen sc1''')
    if not OPT['crst']: a(f'  buffer_store_dword v{c.vSent}, v{c.vCst}, {RG}, s{c.sOCr} offen sc1')
    nafter = 0
    if OPT['kpos'] == 2 and OPT['kvmove'] and not OPT['nokv']:
        a(f'  s_add_u32 s{c.sT}, s{c.sKV}, {1 << 18}')
        for x in kt_loads(c.sT): a('  ' + x); nafter += 1
    if not OPT['nokm'] and not OPT['kmsh'] and not OPT['kmx']: km_store(a, kmsc, L('km'))
    st(6)
    Y = c.vC + 4
    loads = [(f'buffer_load_dword v{Y+i}, v{c.vCld}, {RG}, s{c.sOC} offen offset:{i*512} sc1', Y+i) for i in range(4)]
    delay(a, OPT['preC'])
    if OPT['kmsh'] == 2 and not OPT['nokm'] and not OPT['kmx']: km_store(a, kmsc, L('km'), wait=True)
    elif OPT['ackC']: a(f'  s_waitcnt vmcnt({nafter})')
    poll(a, L('pc'), loads, [r for l, r in loads], fail, bound, shadow=(lambda: km_store(a, kmsc, L('km'), wait=True)) if (OPT['kmsh'] == 1 and not OPT['nokm'] and not OPT['kmx']) else None)
    st(7)
    D = c.vC
    a(f'''  v_fma_mix_f32 v{D}, v{Y}, 1.0, v{Y+1} op_sel_hi:[1,0,1]
  v_fma_mix_f32 v{D+1}, v{Y}, 1.0, v{Y+1} op_sel:[1,0,1] op_sel_hi:[1,0,1]
  v_fma_mix_f32 v{D+2}, v{Y+2}, 1.0, v{Y+3} op_sel_hi:[1,0,1]
  v_fma_mix_f32 v{D+3}, v{Y+2}, 1.0, v{Y+3} op_sel:[1,0,1] op_sel_hi:[1,0,1]
  v_pk_add_f32 {vr(D,2)}, {vr(D,2)}, {vr(D+2,2)}''')
    Y = D
    a(f'''  s_nop 1
  v_permlane32_swap_b32 v{Y}, v{Y+1}
  v_add_f32 v{Y}, v{Y}, v{Y+1}
  v_mov_b32 v{Y+1}, v{Y}
  s_nop 1
  v_permlane32_swap_b32 v{Y}, v{Y+1}
  v_cvt_pk_bf16_f32 v{Y}, v{Y}, v{Y+1}
  v_med3_u32 v{Y}, v{Y}, v{c.vLo}, v{c.vHi}
  buffer_store_dword v{Y}, v{c.vAo}, {RG}, 0 offen{sc}
  s_add_u32 s{c.sS}, s{c.sS}, 1
  s_branch {L("step")}
{L("last")}:''')
    if OPT['splitB']: vcheck(L('pvl'))
    km_store(a, sc if mode == 'G' else KM_SC, L('kml'))
    a(f'  s_branch {done}')

KM_SC = ' sc1'
HOOK = {}
OPT = dict(kmx=0, kpos=1, vspread=2, kvsame=0, nok=0, nokv=0, preA=0, preB=0, preC=0, nokm=0, warm=1, kvmove=1, crst=1, kmsh=2, ackC=1, ackB=1, splitB=0, w3rst=1, zB=1, ackA=0)
def delay(a, n):
    k = n // 4
    while k > 0:
        m = min(k, 16); a(f'  s_nop {m-1}'); k -= m


def emit_start(a, mode, smem0):
    c = C; sc = ' sc1' if mode == 'G' else ''
    a(f'''  s_lshl_b32 s{c.sT}, s{c.sJ}, 6
  s_lshl_b32 s{c.sT+1}, s{c.sW}, 12
  s_add_u32 s{c.sT}, s{c.sT}, s{c.sT+1}''')
    lanesum(a, f'v{c.vT2}', [(4,1,11),(0,4,2)], 0, [f's{c.sT}'])
    a(f'''  buffer_load_dword v16, v{c.vT2}, s[{smem0}:{smem0+3}], 0 offen
  s_mov_b32 s{c.sS}, 0
  s_mov_b32 s{c.sT}, 0
  s_waitcnt vmcnt(0)
  v_med3_u32 v16, v16, v{c.vLo}, v{c.vHi}
  buffer_store_dword v16, v{c.vAst}, s[{c.sRG}:{c.sRG+3}], 0 offen{sc}''')
    for l in (kt_loads(c.sT) if OPT['kvmove'] else vt_loads(c.sT)): a('  ' + l)
```

```python
import sys
from tasks import *
from chain import *
import chain
NAME = 'recurrent_scan__memory_aug_recurrent_mem_tr__glu_gated_reglu__prompt_kernel'
cfg = dict(real=0, dbgt=0, par=2, prof=0, wbl2=0, stamp=-1, force=0, chainonly=0, nochain=0)
cfg.update(chain.OPT)
out = sys.argv[1]
for x in sys.argv[2:]:
    k, v = x.split('='); cfg[k] = int(v)
for k in chain.OPT: chain.OPT[k] = cfg[k]
SC = ' sc1'
HDR = open('recurrent_scan__memory_aug_recurrent_mem_tr__glu_gated_reglu__prompt.s.ref').read().split('\n')
a = Asm(); c = C
for l in HDR[:15]: a(l)
LDS_TK = 131072
a(f'; @launch grid=(256,1,1) block=(256,1,1) lds={LDS_TK + 256}')
a('.amdgcn_target "amdgcn-amd-amdhsa--gfx950"')
a(kernel_head(NAME))
sDbg = 90; sXcc = 92; sTk = 93; sGt = 94; sMode = 95; sQ = 96; sTkt = 97; sIdx = 98; sBnd = 99
sStamp = 100
WS = f's[{T.sWS}:{T.sWS+3}]'
BOUND = 100000
def dstamp(word, v=1, neg=False, cond=None):
    if not cfg['dbgt']: return
    l = a.label('L_ds')
    a(cond if cond else f'  s_cmp_eq_u32 s{T.sW if v < 100 else c.sW}, 0')
    a(f"""  s_cbranch_scc0 {l}
  s_memrealtime s[100:101]
  s_waitcnt lgkmcnt(0)""")
    if neg: a('  s_not_b32 s100, s100')
    a(f"""  v_mov_b32 v{v}, {4*word}
  v_mov_b32 v{v+1}, s100
  s_mov_b64 exec, 1
  global_atomic_umax v{v}, v{v+1}, s[{sDbg}:{sDbg+1}] sc1
  s_mov_b64 exec, -1
{l}:""")
a(f'''  s_cmp_ge_u32 s2, 256
  s_cbranch_scc1 L_end
  s_load_dwordx2 s[{sDbg}:{sDbg+1}], s[0:1], {D_DBG}
  v_lshrrev_b32 v1, 6, v0
  v_and_b32 v0, 63, v0
  s_getreg_b32 s{sXcc}, hwreg(HW_REG_XCC_ID)
  v_readfirstlane_b32 s{T.sW}, v1
  s_and_b32 s{sXcc}, s{sXcc}, 7
  s_mov_b32 s{c.sW}, s{T.sW}''')
emit_ws_srd(a)
if cfg['prof']:
    a(f'  s_memrealtime s[{sStamp}:{sStamp+1}]')
dstamp(0, 1, neg=True); dstamp(1, 1)
a(f'''  s_cmp_lg_u32 s{T.sW}, 0
  s_cbranch_scc1 L_tk_w
  s_lshl_b32 s40, s{sXcc}, 2
  s_add_u32 s40, s40, {DBG_XCD}
  v_mov_b32 v250, s40
  v_mov_b32 v251, 1
  v_mov_b32 v252, {DBG_GT}
  s_mov_b64 exec, 1
  global_atomic_add v248, v250, v251, s[{sDbg}:{sDbg+1}] sc0 sc1
  global_atomic_add v249, v252, v251, s[{sDbg}:{sDbg+1}] sc0 sc1
  s_mov_b64 exec, -1
L_tk_w:''')
emit_ln(a, 2, SC)
emit_ring_init(a, 2, SC)
a(f'''  s_cmp_lg_u32 s{T.sW}, 0
  s_cbranch_scc1 L_fl_w
  s_lshl_b32 s40, s2, 6
  s_add_u32 s40, s40, {FLG}
  v_lshlrev_b32 v1, 2, v0
  v_mov_b32 v2, 0
  s_mov_b32 exec_lo, 0xffff
  s_mov_b32 exec_hi, 0
  buffer_store_dword v2, v1, {WS}, s40 offen sc1
  s_mov_b64 exec, 1
  s_waitcnt vmcnt(0)
  v_mov_b32 v1, {LDS_TK}
  ds_write_b64 v1, v[248:249]
  s_waitcnt lgkmcnt(0)''')
a(f'''  s_mov_b64 exec, -1
L_fl_w:
  s_waitcnt vmcnt(0)
  s_barrier
  s_cmp_lg_u32 s{T.sW}, 0
  s_cbranch_scc1 L_ar_w
  v_mov_b32 v4, {DBG_ARR}
  v_mov_b32 v2, 1
  s_mov_b64 exec, 1
  global_atomic_add v4, v2, s[{sDbg}:{sDbg+1}] sc1
  s_mov_b64 exec, -1
L_ar_w:
  v_mov_b32 v1, {LDS_TK}
  ds_read_b64 v[2:3], v1
  s_waitcnt lgkmcnt(0)
  v_readfirstlane_b32 s{sTk}, v2
  v_readfirstlane_b32 s{sGt}, v3
  s_mov_b32 s{sMode}, 0
  s_cmp_ge_u32 s{sXcc}, 4
  s_cbranch_scc1 L_wait
  s_cmp_ge_u32 s{sTk}, 32
  s_cbranch_scc1 L_wait
  s_mov_b32 s{c.sX}, s{sXcc}
  s_mov_b32 s{c.sJ}, s{sTk}
L_setup:
  s_load_dwordx4 s[64:67], s[0:1], {A_MEM0}
  s_load_dwordx4 s[68:71], s[0:1], {A_WK}
  s_load_dwordx2 s[72:73], s[0:1], {A_WO}
  s_mov_b32 s{c.sPar}, {cfg['par'] if cfg['par'] < 2 else 0}
  s_waitcnt lgkmcnt(0)''')
emit_ring_base(a, 50, 52)
srd(a, c.sRG, 's50', 's51', 4*MB)
srd(a, c.sT0, 's66', 's67', 8*MB); srd(a, c.sT0+4, 's68', 's69', 8*MB)
srd(a, c.sT0+8, 's70', 's71', 8*MB); srd(a, c.sT0+12, 's72', 's73', 8*MB)
srd(a, 76, 's64', 's65', 16384)
emit_setup(a)
emit_weights(a)
def emit_wait_all(p, cand):
    a(f'''{p}:
  s_cmp_lg_u32 s{c.sW}, 0
  s_cbranch_scc1 {p}_w
  v_mov_b32 v17, {DBG_ARR}
  s_mov_b32 s{sBnd}, {4*BOUND}
{p}_p:
  global_load_dword v18, v17, s[{sDbg}:{sDbg+1}] sc1
  s_waitcnt vmcnt(0)
  v_readfirstlane_b32 s40, v18
  s_nop 0
  s_cmp_ge_u32 s40, 256
  s_cbranch_scc1 {p}_ok
  s_sub_u32 s{sBnd}, s{sBnd}, 1
  s_cbranch_scc0 {p}_p
  v_mov_b32 v18, -1
  s_branch {p}_pub
{p}_ok:
  v_mov_b32 v16, {DBG_XCD}
  global_load_dwordx4 v[20:23], v16, s[{sDbg}:{sDbg+1}] sc1
  global_load_dwordx4 v[24:27], v16, s[{sDbg}:{sDbg+1}] offset:16 sc1
  s_waitcnt vmcnt(0)
  v_min_u32 v20, v20, v21
  v_min_u32 v22, v22, v23
  v_min_u32 v24, v24, v25
  v_min_u32 v26, v26, v27
  v_min_u32 v20, v20, v22
  v_min_u32 v24, v24, v26
  v_min_u32 v18, v20, v24
{p}_pub:
  v_mov_b32 v16, {LDS_TK}
  ds_write_b32 v16, v18 offset:8
  s_waitcnt lgkmcnt(0)
{p}_w:
  s_barrier
  v_mov_b32 v16, {LDS_TK}
  ds_read_b32 v17, v16 offset:8
  s_waitcnt lgkmcnt(0)
  v_readfirstlane_b32 s40, v17
  s_nop 0
  s_cmp_eq_u32 s40, -1
  s_cbranch_scc1 L_fail
  s_cmp_ge_u32 s40, {32 if not cfg['force'] else 33}
  s_cbranch_scc0 L_glob''')
    dstamp(2, 160)
    if cand: a('  s_branch L_chain_l')
    else:
        a(f'''  s_sub_u32 s{sQ}, s{sXcc}, 4
  s_and_b32 s{sQ}, s{sQ}, 3
  s_branch L_tasks''')
a(f'''  s_cmp_eq_u32 s{sMode}, 2
  s_cbranch_scc1 L_chain_g''')
emit_wait_all('L_waitc', True)
emit_wait_all('L_wait', False)
a(f'''L_glob:
  s_cmp_ge_u32 s{sGt}, 128
  s_cbranch_scc1 L_glob_t
  s_lshr_b32 s{c.sX}, s{sGt}, 5
  s_and_b32 s{c.sJ}, s{sGt}, 31
  s_mov_b32 s{sMode}, 2
  s_branch L_setup
L_glob_t:
  s_sub_u32 s{sQ}, s{sGt}, 128
  s_lshr_b32 s{sQ}, s{sQ}, 5
  s_and_b32 s{sQ}, s{sQ}, 3
  s_branch L_tasks''')

sPub = 48; sFo = 49
def after_a(a, pfx):
    if cfg['dbgt']:
        for wd, stp in ((4, 8), (5, 32)):
            l = a.label('L_cs')
            a(f'  s_cmp_eq_u32 s{c.sS}, {stp}\n  s_cbranch_scc0 {l}')
            dstamp(wd, 160, cond=f'  s_cmp_lg_u32 s{sPub}, 0')
            a(f'{l}:')
    a(f'''  s_cmp_eq_u32 s{sPub}, 0
  s_cbranch_scc1 {pfx}_npub
  s_sub_u32 s{c.sT}, s{c.sS}, 1
  s_max_i32 s{c.sT}, s{c.sT}, 0
  v_mov_b32 v254, s{c.sT}
  s_mov_b32 s{sFo}, {FLG + F_PROG}
  buffer_store_dword v254, off, s[{c.sWS}:{c.sWS+3}], s{sFo} sc1
{pfx}_npub:
  s_cmp_lg_u32 s{c.sW}, 3
  s_cbranch_scc1 {pfx}_nkv
  s_and_b32 s{c.sT}, s{c.sS}, 7
  s_cmp_lg_u32 s{c.sT}, 5
  s_cbranch_scc1 {pfx}_nkv
  s_add_u32 s{c.sT}, s{c.sS}, 3
  s_lshr_b32 s{c.sT}, s{c.sT}, 3
  s_min_u32 s{c.sT}, s{c.sT}, 7
  s_lshl_b32 s{c.sT}, s{c.sT}, 7
  s_add_u32 s{sFo}, s{c.sT}, {FLG + F_KV}
  buffer_load_dword v253, off, s[{c.sWS}:{c.sWS+3}], s{sFo} sc1
{pfx}_nkv:''')
def pre_red1(a, pfx, fail):
    nk = 0 if cfg['nokv'] else 8
    a(f'''  s_cmp_lg_u32 s{c.sW}, 3
  s_cbranch_scc1 {pfx}_kvok
  s_and_b32 s{c.sT}, s{c.sS}, 7
  s_cmp_lg_u32 s{c.sT}, 5
  s_cbranch_scc1 {pfx}_kvok
  s_waitcnt vmcnt({nk})
  s_mov_b32 s{c.sBound}, {BOUND}
{pfx}_kvp:
  v_readfirstlane_b32 s{c.sT}, v253
  s_nop 0
  s_cmp_ge_u32 s{c.sT}, 32
  s_cbranch_scc1 {pfx}_kvok
  buffer_load_dword v253, off, s[{c.sWS}:{c.sWS+3}], s{sFo} sc1
  s_waitcnt vmcnt(0)
  s_sub_u32 s{c.sBound}, s{c.sBound}, 1
  s_cbranch_scc0 {pfx}_kvp
  s_branch {fail}
{pfx}_kvok:''')
if not cfg['chainonly']:
    chain.HOOK['after_a'] = after_a; chain.HOOK['pre_red1'] = pre_red1
BOUND2 = 200000
def stamp(a, k):
    l = a.label('L_st')
    tm = 's_memrealtime' if cfg['real'] else 's_memtime'
    ex = {1: 60, 4: 61, 7: 62}.get(k)
    exs = f'  s_sub_u32 s{ex}, {BOUND2}, s{c.sBound}\n' if ex else ''
    a(f'  s_cmp_eq_u32 s{c.sS}, {cfg["stamp"]}\n  s_cbranch_scc0 {l}\n  {tm} s[{64+2*k}:{65+2*k}]\n{exs}{l}:')
stf = stamp if cfg['stamp'] >= 0 else None
def chain_entry(mode, pfx):
    a(f'''  s_mov_b32 s{sPub}, 0
  s_add_u32 s50, s{c.sX}, s{c.sJ}
  s_cmp_lg_u32 s50, 0
  s_cbranch_scc1 {pfx}_np
  s_cmp_eq_u32 s{c.sW}, 2
  s_cselect_b32 s{sPub}, 1, 0
{pfx}_np:''')
    if cfg['par'] == 2:
        a(f'''  s_add_u32 s50, s{c.sX}, s{c.sJ}
  s_add_u32 s50, s50, s{c.sW}
  s_cmp_lg_u32 s50, 0
  s_cbranch_scc1 {pfx}_npr
  s_mov_b64 exec, 1
  s_mov_b32 s56, 0
  s_mov_b32 s57, 0
  s_waitcnt vmcnt(0)''')
        for i in range(4):
            for par in range(2):
                a(f'''  s_mov_b32 s51, {RC + 3*262144 + (3+4*i)*16384 + par*8192}
  s_memtime s[52:53]
  s_waitcnt lgkmcnt(0)
  buffer_store_dword v{c.vSent}, off, s[{c.sRG}:{c.sRG+3}], s51 sc1
  s_waitcnt vmcnt(0)
  s_memtime s[54:55]
  s_waitcnt lgkmcnt(0)
  s_sub_u32 s54, s54, s52
  s_add_u32 s{56+par}, s{56+par}, s54''')
        a(f'''  s_cmp_lt_u32 s57, s56
  s_cselect_b32 s56, 2, 1
  v_mov_b32 v16, {DBG_PAR}
  v_mov_b32 v17, s56
  global_store_dword v16, v17, s[{sDbg}:{sDbg+1}] sc1
  s_mov_b64 exec, -1
{pfx}_npr:
  v_mov_b32 v16, {DBG_PAR}
  s_mov_b32 s{c.sBound}, {BOUND}
{pfx}_pp:
  global_load_dword v17, v16, s[{sDbg}:{sDbg+1}] sc1
  s_waitcnt vmcnt(0)
  v_readfirstlane_b32 s50, v17
  s_nop 0
  s_cmp_lg_u32 s50, 0
  s_cbranch_scc1 {pfx}_ppok
  s_sub_u32 s{c.sBound}, s{c.sBound}, 1
  s_cbranch_scc0 {pfx}_pp
  s_branch L_fail
{pfx}_ppok:
  s_sub_u32 s50, s50, 1
  s_and_b32 s50, s50, 1
  s_lshl_b32 s50, s50, 13
  v_add_u32 v{c.vCst}, s50, v{c.vCst}
  v_add_u32 v{c.vCld}, s50, v{c.vCld}''')
    if not cfg['chainonly']:
        a(f'''  s_mov_b32 s{sFo}, {FLG + F_KV}
  s_mov_b32 s{c.sBound}, {BOUND}
{pfx}_kv0:
  buffer_load_dword v253, off, s[{c.sWS}:{c.sWS+3}], s{sFo} sc1
  s_waitcnt vmcnt(0)
  v_readfirstlane_b32 s50, v253
  s_nop 0
  s_cmp_ge_u32 s50, 32
  s_cbranch_scc1 {pfx}_kv0ok
  s_sub_u32 s{c.sBound}, s{c.sBound}, 1
  s_cbranch_scc0 {pfx}_kv0
  s_branch L_fail
{pfx}_kv0ok:''')
    if cfg['prof']:
        a('  s_memrealtime s[80:81]\n  s_memtime s[84:85]\n  s_waitcnt lgkmcnt(0)')
    dstamp(3, 160)
    emit_start(a, mode, 76)
    emit_loop(a, mode, pfx, 'L_fail', 'L_chain_done', stamp=stf)
a('L_chain_l:')
if cfg['nochain']:
    a(f'''  s_mov_b32 s50, {FLG + F_PROG}
  v_mov_b32 v16, 64
  buffer_store_dword v16, off, s[4:7], s50 sc1
  s_waitcnt vmcnt(0)
  s_branch L_end''')
chain_entry('L', 'LL')
a('L_chain_g:')
chain_entry('G', 'LG')
a(f'''L_chain_done:
  s_waitcnt vmcnt(0)
  s_barrier''')
dstamp(6, 160)
if cfg['prof']:
    a(f'''  s_memrealtime s[82:83]
  s_memtime s[86:87]
  s_waitcnt lgkmcnt(0)
  s_lshl_b32 s50, s{c.sX}, 5
  s_add_u32 s50, s50, s{c.sJ}
  s_lshl_b32 s50, s50, 2
  s_add_u32 s50, s50, s{c.sW}
  s_lshl_b32 s50, s50, 6
  s_add_u32 s50, s50, {200*MB}
  v_mov_b32 v1, s50
  s_sub_u32 s86, s86, s84''')
    for k in range(8): a(f'  v_mov_b32 v{2+k}, s{64+2*k}')
    a(f'''  v_mov_b32 v10, s86
  v_mov_b32 v11, s{sStamp}
  v_mov_b32 v12, s80
  v_mov_b32 v13, s82
  s_mov_b64 exec, 1
  buffer_store_dwordx4 v[2:5], v1, s[{c.sWS}:{c.sWS+3}], 0 offen
  buffer_store_dwordx4 v[6:9], v1, s[{c.sWS}:{c.sWS+3}], 0 offen offset:16
  buffer_store_dwordx4 v[10:13], v1, s[{c.sWS}:{c.sWS+3}], 0 offen offset:32
  v_mov_b32 v14, s60
  v_mov_b32 v15, s61
  v_mov_b32 v16, s62
  v_mov_b32 v17, 0
  buffer_store_dwordx4 v[14:17], v1, s[{c.sWS}:{c.sWS+3}], 0 offen offset:48
  s_mov_b64 exec, -1''')
a(f'''  s_cmp_lg_u32 s{c.sW}, 0
  s_cbranch_scc1 L_end
  s_mov_b32 s40, {FLG + F_CDONE}
  v_mov_b32 v1, s40
  v_mov_b32 v2, 1
  s_mov_b64 exec, 1
  buffer_atomic_add v2, v1, s[{c.sWS}:{c.sWS+3}], 0 offen sc0 sc1
  s_waitcnt vmcnt(0)
  v_readfirstlane_b32 s40, v2
  s_nop 0
  s_cmp_eq_u32 s40, 127
  s_cbranch_scc0 L_end
  s_mov_b32 s40, {FLG + F_PROG}
  v_mov_b32 v2, 64
  buffer_store_dword v2, off, s[{c.sWS}:{c.sWS+3}], s40 sc1
  s_waitcnt vmcnt(0)
  s_branch L_end''')

def wait_flag(off_const, sreg_idx, target, shift=7):
    l = a.label('L_wf')
    if sreg_idx is None: a(f'  s_mov_b32 s41, {FLG + off_const}')
    else: a(f'  s_lshl_b32 s41, s{sreg_idx}, {shift}\n  s_add_u32 s41, s41, {FLG + off_const}')
    a(f'''  s_cmp_lg_u32 s{T.sW}, 0
  s_cbranch_scc1 {l}_w
  s_mov_b32 s{sBnd}, {BOUND}
{l}_p:
  buffer_load_dword v1, off, {WS}, s41 sc1
  s_waitcnt vmcnt(0)
  v_readfirstlane_b32 s42, v1
  s_nop 0
  s_cmp_ge_u32 s42, {target}
  s_cbranch_scc1 {l}_w
  s_sub_u32 s{sBnd}, s{sBnd}, 1
  s_cbranch_scc0 {l}_p
  v_mov_b32 v1, {DBG_FAIL + 4}
  v_mov_b32 v2, 1
  s_mov_b64 exec, 1
  global_atomic_add v1, v2, s[{sDbg}:{sDbg+1}] sc1
  s_mov_b64 exec, -1
{l}_w:''')
sSig = 35
sBase = 32
a('L_tasks:')
a(f'  s_mov_b32 s{T.sW}, s{c.sW}')
a(f'  s_mov_b32 s{sSig}, -1')
if cfg['dbgt']: a('  s_mov_b32 s70, 15')
a('L_next:')
a(f'''  s_waitcnt vmcnt(0)
  s_barrier
  s_cmp_lg_u32 s{T.sW}, 0
  s_cbranch_scc1 L_next_w
  s_mov_b64 exec, 1''')
if cfg['prof']:
    a(f'''  s_cmp_eq_u32 s{sSig}, -1
  s_cbranch_scc1 L_nprof
  s_memrealtime s[82:83]
  s_memtime s[74:75]
  s_lshl_b32 s40, s{sQ}, 9
  s_add_u32 s40, s40, s{sTkt}
  s_lshl_b32 s40, s40, 5
  s_add_u32 s40, s40, {201*MB}
  s_waitcnt lgkmcnt(0)
  s_sub_u32 s41, s88, s86
  v_mov_b32 v8, s41
  s_sub_u32 s41, s74, s88
  v_mov_b32 v9, s41
  s_sub_u32 s41, s74, s86
  v_mov_b32 v10, s41
  v_mov_b32 v11, 0
  s_add_u32 s41, s40, 16
  buffer_store_dwordx4 v[8:11], off, {WS}, s41
  v_mov_b32 v4, s80
  v_mov_b32 v5, s84
  v_mov_b32 v6, s82
  s_lshl_b32 s41, s{sXcc}, 8
  s_add_u32 s41, s41, s{sTk}
  v_mov_b32 v7, s41
  buffer_store_dwordx4 v[4:7], off, {WS}, s40
L_nprof:''')
if cfg['dbgt']:
    a(f'''  s_memrealtime s[100:101]
  s_waitcnt lgkmcnt(0)
  s_lshl_b32 s40, s70, 2
  v_mov_b32 v1, s40
  v_mov_b32 v2, s100
  global_atomic_umax v1, v2, s[{sDbg}:{sDbg+1}] sc1''')
a(f'''  s_cmp_eq_u32 s{sSig}, -1
  s_cbranch_scc1 L_nosig''')
if cfg['wbl2']: a('  buffer_wbl2 sc1\n  s_waitcnt vmcnt(0)')
a(f'''  s_add_u32 s40, s{sSig}, {FLG}
  v_mov_b32 v1, s40
  v_mov_b32 v2, 1
  buffer_atomic_add v2, v1, {WS}, 0 offen sc1
L_nosig:
  s_lshl_b32 s40, s{sQ}, 5
  s_add_u32 s40, s40, {DBG_QUEUE}
  v_mov_b32 v1, s40
  v_mov_b32 v2, 1
  global_atomic_add v3, v1, v2, s[{sDbg}:{sDbg+1}] sc0 sc1
  s_waitcnt vmcnt(0)
  v_mov_b32 v1, {LDS_TK}
  ds_write_b32 v1, v3 offset:16
  s_waitcnt lgkmcnt(0)
  s_mov_b64 exec, -1
L_next_w:
  s_barrier
  v_mov_b32 v1, {LDS_TK}
  ds_read_b32 v3, v1 offset:16
  s_waitcnt lgkmcnt(0)
  v_readfirstlane_b32 s{sTkt}, v3''')
if cfg['prof']: a('  s_memrealtime s[80:81]\n  s_waitcnt lgkmcnt(0)')
ranges = []
ranges.append((32, 'KV0')); ranges.append((28, 'GU0')); ranges.append((4, 'WOF')); ranges.append((4, 'D0'))
ranges.append((28, 'GU4')); ranges.append((4, 'D4')); ranges.append((32, 'KV4')); ranges.append((32, 'Q'))
ranges.append((31*8, 'AW')); ranges.append((4, 'A31')); ranges.append((16, 'W31'))
start = 0
DW = dict(KV0=8, GU0=9, WOF=9, D0=10, GU4=11, D4=12, KV4=13, Q=14, AW=7, A31=7, W31=7)
for cnt, lab in ranges:
    if cfg['dbgt']: a(f'  s_mov_b32 s70, {DW[lab]}')
    a(f'''  s_sub_u32 s{sIdx}, s{sTkt}, {start}
  s_cmp_lt_u32 s{sTkt}, {start + cnt}
  s_cbranch_scc1 T_{lab}''')
    start += cnt
a('  s_branch L_end')
print('tasks per queue', start)
def mark():
    if cfg['prof']: a('  s_memrealtime s[84:85]\n  s_memtime s[86:87]\n  s_memtime s[88:89]\n  s_waitcnt lgkmcnt(0)')
def mark2():
    if cfg['prof']: a('  s_memtime s[88:89]\n  s_waitcnt lgkmcnt(0)')
a(f'''T_KV0:
  s_and_b32 s{T.sM}, s{sIdx}, 3
  s_lshr_b32 s40, s{sIdx}, 2
  s_branch T_KV
T_KV4:
  s_lshr_b32 s{T.sM}, s{sIdx}, 3
  s_add_u32 s{T.sM}, s{T.sM}, 4
  s_and_b32 s40, s{sIdx}, 7
T_KV:
  s_and_b32 s41, s40, 3
  s_lshl_b32 s{T.sN}, s{sQ}, 2
  s_add_u32 s{T.sN}, s{T.sN}, s41
  s_lshl_b32 s{sSig}, s{T.sM}, 7
  s_add_u32 s{sSig}, s{sSig}, {F_KV}
  s_cmp_ge_u32 s40, 4
  s_cbranch_scc1 T_V''')
emit_gemm_params(a, TY_K)
a(f'  s_mov_b32 s{sBase}, {K}\n  s_mov_b32 s{T.sTy}, 0\n  s_branch G_n')
a(f'''T_Q:
  s_lshr_b32 s{T.sM}, s{sIdx}, 2
  s_and_b32 s41, s{sIdx}, 3
  s_lshl_b32 s{T.sN}, s{sQ}, 2
  s_add_u32 s{T.sN}, s{T.sN}, s41
  s_lshl_b32 s{sSig}, s{T.sM}, 7
  s_add_u32 s{sSig}, s{sSig}, {F_Q}''')
emit_gemm_params(a, TY_Q)
a(f'  s_mov_b32 s{sBase}, {Q}\n  s_mov_b32 s{T.sTy}, 0\n  s_branch G_n')
a(f'''T_GU0:
  s_and_b32 s{T.sM}, s{sIdx}, 3
  s_branch T_GU
T_GU4:
  s_and_b32 s{T.sM}, s{sIdx}, 3
  s_add_u32 s{T.sM}, s{T.sM}, 4
T_GU:
  s_lshr_b32 s41, s{sIdx}, 2
  s_mul_i32 s{T.sN}, s{sQ}, 7
  s_add_u32 s{T.sN}, s{T.sN}, s41
  s_lshl_b32 s{sSig}, s{T.sM}, 7
  s_add_u32 s{sSig}, s{sSig}, {F_GU}''')
emit_gemm_params(a, TY_GU)
a(f'  s_mov_b32 s{T.sTy}, 2\n  s_branch G_n')
a(f'''T_D0:
  s_mov_b32 s{T.sM}, s{sIdx}
  s_branch T_D
T_D4:
  s_add_u32 s{T.sM}, s{sIdx}, 4
T_D:
  s_mov_b32 s{T.sN}, s{sQ}
  s_lshl_b32 s{sSig}, s{T.sM}, 7
  s_add_u32 s{sSig}, s{sSig}, {F_D}''')
wait_flag(F_GU, T.sM, 28)
a('  s_barrier')
emit_gemm_params(a, TY_D)
a(f'  s_mov_b32 s{T.sTy}, 3')
a('G_n:'); mark()
emit_gemm_main(a, False, 'G_n'); mark2()
a(f'''  s_cmp_eq_u32 s{T.sTy}, 2
  s_cbranch_scc1 G_egu
  s_cmp_eq_u32 s{T.sTy}, 3
  s_cbranch_scc1 G_ed''')
emit_epi_kq(a, f's{sBase}', SC); a('  s_branch L_next')
a('G_egu:'); emit_epi_gu(a, SC); a('  s_branch L_next')
a('G_ed:'); emit_epi_d(a, SC); a('  s_branch L_next')
a('T_V:'); emit_gemm_params(a, TY_V); mark(); emit_gemm_main(a, True, 'G_s'); mark2(); emit_epi_v(a, SC); a('  s_branch L_next')
a(f'''T_WOF:
  s_mov_b32 s{sSig}, {F_WOF}
  s_lshl_b32 s{T.sM}, s{sQ}, 5
  s_lshl_b32 s40, s{sIdx}, 3
  s_add_u32 s{T.sM}, s{T.sM}, s40
  s_add_u32 s{T.sN}, s{T.sM}, 8''')
mark()
a('T_WOF_l:')
emit_wo_repack(a, T.sM, SC)
a(f'''  s_add_u32 s{T.sM}, s{T.sM}, 1
  s_cmp_lt_u32 s{T.sM}, s{T.sN}
  s_cbranch_scc1 T_WOF_l
  s_branch L_next''')
a(f'''T_AW:
  s_lshr_b32 s{T.sM}, s{sIdx}, 3        ; block c
  s_and_b32 s40, s{sIdx}, 7
  s_cmp_ge_u32 s40, 4
  s_cbranch_scc1 T_W
  s_branch T_A
T_A31:
  s_mov_b32 s{T.sM}, 31
  s_mov_b32 s40, s{sIdx}
T_A:
  s_lshl_b32 s{sSig}, s{T.sM}, 7
  s_add_u32 s{sSig}, s{sSig}, {F_O}
  s_lshr_b32 s{T.sN}, s40, 1
  s_lshl_b32 s41, s{sQ}, 1
  s_add_u32 s{T.sN}, s{T.sN}, s41
  s_lshl_b32 s{T.sM}, s{T.sM}, 1
  s_and_b32 s40, s40, 1
  s_add_u32 s{T.sM}, s{T.sM}, s40       ; segment
  s_lshr_b32 s{T.sTy}, s{T.sM}, 3''')
wait_flag(F_Q, T.sTy, 16)
a(f'  s_add_u32 s{T.sTy}, s{T.sM}, 1')
l = a.label('L_wp')
a(f'''  s_mov_b32 s41, {FLG + F_PROG}
  s_cmp_lg_u32 s{T.sW}, 0
  s_cbranch_scc1 {l}_w
  s_mov_b32 s{sBnd}, {BOUND}
{l}_p:
  buffer_load_dword v1, off, {WS}, s41 sc1
  s_waitcnt vmcnt(0)
  v_readfirstlane_b32 s42, v1
  s_nop 0
  s_cmp_ge_u32 s42, s{T.sTy}
  s_cbranch_scc1 {l}_w
  s_sub_u32 s{sBnd}, s{sBnd}, 1
  s_cbranch_scc0 {l}_p
  v_mov_b32 v1, {DBG_FAIL + 8}
  v_mov_b32 v2, 1
  s_mov_b64 exec, 1
  global_atomic_add v1, v2, s[{sDbg}:{sDbg+1}] sc1
  s_mov_b64 exec, -1
{l}_w:
  s_barrier''')
mark()
emit_attn(a, T.sM, T.sN, SC)
a('  s_branch L_next')
def wo_waits(sBlk):
    wait_flag(F_WOF, None, 16)
    a(f'  s_lshr_b32 s{T.sTy}, s{sBlk}, 2')
    wait_flag(F_D, T.sTy, 4)
    wait_flag(F_O, sBlk, 16)
    a('  s_barrier')
a(f'''T_W:
  s_mov_b32 s{sSig}, {F_CDONE + 128}
  s_and_b32 s40, s40, 3
  s_lshl_b32 s{T.sN}, s{sQ}, 2
  s_add_u32 s{T.sN}, s{T.sN}, s40
  s_lshl_b32 s{T.sN}, s{T.sN}, 2''')
wo_waits(T.sM)
a(f'  s_lshl_b32 s{T.sM}, s{T.sM}, 2')
mark()
emit_wo_gemm(a, T.sM, T.sN, 4, 4)
a('  s_branch L_next')
a(f'''T_W31:
  s_mov_b32 s{sSig}, {F_CDONE + 128}
  s_mov_b32 s{T.sM}, 31''')
wo_waits(T.sM)
a(f'''  s_lshr_b32 s40, s{sIdx}, 3
  s_lshl_b32 s40, s40, 1
  s_add_u32 s{T.sM}, s40, 124
  s_and_b32 s40, s{sIdx}, 7
  s_lshl_b32 s{T.sN}, s{sQ}, 3
  s_add_u32 s{T.sN}, s{T.sN}, s40
  s_lshl_b32 s{T.sN}, s{T.sN}, 1''')
mark()
emit_wo_gemm(a, T.sM, T.sN, 2, 2, depth=8)
a('  s_branch L_next')
a(f'''L_fail:
  v_mov_b32 v1, {DBG_FAIL}
  v_mov_b32 v2, 1
  s_mov_b64 exec, 1
  global_atomic_add v1, v2, s[{sDbg}:{sDbg+1}] sc1
  s_waitcnt vmcnt(0)
L_end:
  s_endpgm''')
a(kernel_desc(NAME, 512, accum=256))
open(out, 'w').write(a.text())
check_local(out, NAME)
```

```python
from lib_asm import *

PF = 4
PFL = ''
PFM = 3
DP = 0
class G:
    vXlo, vXhi = 1, 2
    vWlo = 4
    vWhi = 8
    vDX = 12
    vDW = 16
    vT = 20
    vDX2 = 40; vDW2 = 44
    vPX = 46; vPW = 48; vJ = 49
    WF = [64, 128]
    XF = [96, 160]
    sX = 8
    sW0 = 12
    sW1 = 16
    sOX = 20
    sOW0 = 21
    sOW1 = 22
    sKW = 23
    sM0X = 24
    sM0W = 25
    sLoop = 26
    sW = 27

def acc(i, j):
    b = (i*8 + j)*4
    return f'a[{b}:{b+3}]'

def setup_lane_consts(a, ldx_reg_or_imm, ldw_reg_or_imm):
    g = G
    a(f'''  v_and_b32 v20, 63, v0                 ; lane
  v_and_b32 v21, 15, v20                ; l&15
  v_lshrrev_b32 v22, 4, v20             ; g
  v_lshrrev_b32 v23, 3, v20
  v_and_b32 v23, 1, v23
  v_lshlrev_b32 v23, 1, v23
  v_xor_b32 v23, v22, v23
  v_lshlrev_b32 v23, 4, v23
  v_lshlrev_b32 v24, 6, v21
  v_add_u32 v23, v23, v24
  s_lshr_b32 s40, s{g.sW}, 1            ; wm
  s_lshl_b32 s40, s40, 13               ; wm*128*64
  v_add_u32 v{g.vXlo}, s40, v23
  v_add_u32 v{g.vXhi}, 0x10000, v{g.vXlo}
  v_and_b32 v23, 3, v20                 ; c
  v_lshrrev_b32 v24, 2, v20
  v_and_b32 v24, 3, v24                 ; r
  v_and_b32 v25, 1, v22
  v_lshlrev_b32 v25, 2, v25
  v_or_b32 v25, v25, v24                ; f
  v_lshlrev_b32 v26, 3, v22
  v_add_u32 v26, v26, v24               ; 8g+r
  v_lshlrev_b32 v26, 8, v26
  v_lshlrev_b32 v23, 3, v23
  v_add_u32 v26, v26, v23
  v_add_u32 v26, 0x4000, v26
  s_and_b32 s40, s{g.sW}, 1             ; wn
  s_lshl_b32 s40, s40, 2''')
    for jj in range(4):
        a(f'''  s_add_u32 s41, s40, {jj}
  v_xor_b32 v27, s41, v25
  v_lshlrev_b32 v27, 5, v27
  v_add_u32 v{g.vWlo+jj}, v26, v27
  v_add_u32 v{g.vWhi+jj}, 0x10000, v{g.vWlo+jj}''')
    a(f'''  v_lshrrev_b32 v23, 2, v20
  s_lshl_b32 s40, s{g.sW}, 6
  v_add_u32 v23, s40, v23               ; row (p=0)
  v_mul_lo_u32 v23, v23, {ldx_reg_or_imm}
  v_lshrrev_b32 v24, 5, v20
  v_lshlrev_b32 v24, 1, v24
  v_and_b32 v25, 3, v20
  v_xor_b32 v24, v24, v25
  v_lshlrev_b32 v24, 4, v24
  v_add_u32 v{g.vDX}, v23, v24
  s_lshl_b32 s40, {ldx_reg_or_imm}, 4''')
    for p in range(1, 4):
        a(f'  v_add_u32 v{g.vDX+p}, s40, v{g.vDX+p-1}')
    a(f'''  v_lshrrev_b32 v23, 4, v20             ; i>>4
  s_and_b32 s40, s{g.sW}, 1
  s_lshl_b32 s40, s40, 2
  v_or_b32 v24, s40, v23                ; f
  v_and_b32 v25, 15, v20
  v_lshrrev_b32 v26, 1, v25
  v_xor_b32 v26, v26, v24
  v_lshlrev_b32 v26, 5, v26
  v_and_b32 v25, 1, v25
  v_lshlrev_b32 v25, 4, v25
  v_add_u32 v26, v26, v25
  s_lshl_b32 s40, s{g.sW}, 3
  v_add_u32 v23, s40, v23
  v_mul_lo_u32 v23, v23, {ldw_reg_or_imm}
  v_add_u32 v{g.vDW}, v23, v26
  s_lshl_b32 s40, {ldw_reg_or_imm}, 2
  v_add_u32 v{g.vDW+1}, s40, v{g.vDW}
  s_lshl_b32 s{g.sM0X}, s{g.sW}, 12
  s_lshl_b32 s{g.sM0W}, s{g.sW}, 11
  s_add_u32 s{g.sM0W}, s{g.sM0W}, 0x4000
  s_lshl_b32 s{g.sKW}, {ldw_reg_or_imm}, 5''')

def dma_ops(stage, nj=8):
    g = G; ops = []
    for p in range(4):
        ops.append((f's_add_u32 m0, s{g.sM0X}, {stage*32768 + p*1024}',
                    f'buffer_load_dwordx4 v{g.vDX+p}, s[{g.sX}:{g.sX+3}], s{g.sOX} offen lds'))
    for p in (range(4) if nj == 8 else (0, 2)):
        rho, hh = p & 1, p >> 1
        srd = g.sW1 if rho else g.sW0; so = g.sOW1 if rho else g.sOW0
        ops.append((f's_add_u32 m0, s{g.sM0W}, {stage*32768 + rho*8192 + hh*1024}',
                    f'buffer_load_dwordx4 v{g.vDW+hh}, s[{srd}:{srd+3}], s{so} offen lds'))
    adv = [f's_add_u32 s{g.sOX}, s{g.sOX}, 64', f's_add_u32 s{g.sOW0}, s{g.sOW0}, s{g.sKW}', f's_add_u32 s{g.sOW1}, s{g.sOW1}, s{g.sKW}']
    return ops, (adv if nj == 8 else adv[:2])

def setup_asym(a, ldx, ldw):
    g = G
    a(f'  s_lshl_b32 s40, {ldx}, 7')
    for p in range(4): a(f'  v_add_u32 v{g.vDX2+p}, s40, v{g.vDX+p}')
    a(f'  s_lshl_b32 s41, {ldw}, 4')
    for h in range(2): a(f'  v_add_u32 v{g.vDW2+h}, s41, v{g.vDW+h}')
    a(f'''  s_and_b32 s41, s{g.sW}, 1
  s_lshl_b32 s41, s41, 6
  v_add_u32 v23, s41, v20
  v_mul_lo_u32 v{g.vPX}, v23, {ldx}
  v_add_u32 v{g.vPX+1}, s40, v{g.vPX}
  v_lshrrev_b32 v23, 1, v20
  v_mul_lo_u32 v23, v23, {ldw}
  v_and_b32 v24, 1, v20
  v_lshl_add_u32 v{g.vPW}, v24, 7, v23''')

def dma_ops2(stage):
    g = G; X = []; W = []
    for v, (dx, dw) in enumerate(((g.vDX, g.vDW), (g.vDX2, g.vDW2))):
        for p in range(4):
            X.append((f's_add_u32 m0, s{g.sM0X}, {stage*32768 + p*1024 + v*8192}',
                      f'buffer_load_dwordx4 v{dx+p}, s[{g.sX}:{g.sX+3}], s{g.sOX} offen lds'))
        for p in range(4):
            rho, hh = p & 1, p >> 1
            srd = g.sW1 if rho else g.sW0; so = g.sOW1 if rho else g.sOW0
            W.append((f's_add_u32 m0, s{g.sM0W}, {stage*32768 + rho*8192 + hh*1024 + v*4096}',
                      f'buffer_load_dwordx4 v{dw+hh}, s[{srd}:{srd+3}], s{so} offen lds'))
    adv = [f's_add_u32 s{g.sOX}, s{g.sOX}, 64', f's_add_u32 s{g.sOW0}, s{g.sOW0}, s{g.sKW}', f's_add_u32 s{g.sOW1}, s{g.sOW1}, s{g.sKW}']
    return X + W, adv

def pf_ops(s, xoff):
    g = G
    return [f'buffer_load_dword v{g.vJ}, v{g.vPX + (s & 1)}, s[{g.sX}:{g.sX+3}], s{g.sOX} offen offset:{xoff}{PFL}' if PFM & 1 else 's_nop 0',
            f'buffer_load_dword v{g.vJ}, v{g.vPW}, s[{g.sW0}:{g.sW0+3}], s{g.sOW0} offen{PFL}' if PFM & 2 else 's_nop 0']

def step2(a, s, swap, role, dma=True, reads=True, vm=None, first=False):
    g = G; st = s & 1
    R = read_ops((s+1) & 3, st ^ 1, 8) if reads else []
    a(f'  s_waitcnt vmcnt({vm}) lgkmcnt(0)' if (vm is not None and role == 'd') else '  s_waitcnt lgkmcnt(0)')
    a('  s_barrier')
    slots = [[] for _ in range(64)]
    if dma and role == 'd':
        D, adv = dma_ops2((s+PF) & 3)
        for k, (m0, ld) in enumerate(D):
            slots[4*k+1].append(m0); slots[4*k+3].append(ld)
        slots[33].append(adv[0]); slots[63] += adv[1:]
    if dma and role == 'p':
        P = pf_ops(s, (DP-PF)*64)
        slots[5].append(P[0]); slots[21].append(P[1])
        slots[33].append(f's_add_u32 s{g.sOX}, s{g.sOX}, 64'); slots[35].append(f's_add_u32 s{g.sOW0}, s{g.sOW0}, s{g.sKW}')
    for k, r in enumerate(R): slots[2*k].append(r)
    n = 0
    for i in range(8):
        for j in range(8):
            a('  ' + mfma(i, j, st, swap, first))
            for x in slots[n]: a('  ' + x)
            n += 1

def read_ops(stage, st, nj=8):
    g = G; hi = stage >= 2; so = (stage & 1)*32768
    xa = g.vXhi if hi else g.vXlo; wa = g.vWhi if hi else g.vWlo
    W = []; X = []
    for j in range(nj):
        rho, jj = j >> 2, j & 3; r = g.WF[st] + 4*j
        W.append([f'ds_read_b64_tr_b16 v[{r}:{r+1}], v{wa+jj} offset:{so + rho*8192}',
                  f'ds_read_b64_tr_b16 v[{r+2}:{r+3}], v{wa+jj} offset:{so + rho*8192 + 1024}'])
    for i in range(8):
        r = g.XF[st] + 4*i
        X.append(f'ds_read_b128 v[{r}:{r+3}], v{xa} offset:{so + i*1024}')
    out = []
    for j in range(nj):
        out += W[j]
    res = []
    for k in range(8):
        res.append(X[k]); res += (out[2*k:2*k+2] if nj == 8 else out[k:k+1])
    return res

def mfma(i, j, st, swap, first=False):
    g = G
    w = f'v[{g.WF[st]+4*j}:{g.WF[st]+4*j+3}]'; x = f'v[{g.XF[st]+4*i}:{g.XF[st]+4*i+3}]'
    c = '0' if first else acc(i, j)
    return f'v_mfma_f32_16x16x32_bf16 {acc(i,j)}, {x if swap else w}, {w if swap else x}, {c}'

def step(a, s, swap, dma=True, reads=True, vm=8, first=False, sched=None, nj=8):
    st = s & 1
    fill = []
    if reads: R = read_ops((s+1) & 3, st ^ 1, nj)
    else: R = []
    D, adv = dma_ops((s+PF) & 3, nj) if dma else ([], [])
    if vm is not None: a(f'  s_waitcnt vmcnt({vm}) lgkmcnt(0)')
    else: a('  s_waitcnt lgkmcnt(0)')
    a('  s_barrier')
    nm = 8*nj
    slots = [[] for _ in range(nm)]
    for k, (m0, ld) in enumerate(D):
        p = 3 + 6*k if nj == 8 else 2 + 4*k
        slots[p-1].append(m0); slots[p].append(ld)
    for k, x in enumerate(adv): slots[(50 if nj == 8 else 26)+k].append(x)
    for k, r in enumerate(R):
        slots[min(nm-1, 2*k if nj == 8 else (3*k)//2)].append(r)
    n = 0
    for i in range(8):
        for j in range(nj):
            a('  ' + mfma(i, j, st, swap, first))
            for x in slots[n]: a('  ' + x)
            n += 1
```

```python
from util import *
from layout import *
import gemmlib
from gemmlib import G as GM, setup_lane_consts, dma_ops, read_ops, step

class T:
    sWS = 4
    sW = 27
    sM = 28; sN = 29; sTy = 30; sNL = 31
    sLdx = 33; sLdw = 34
    sOut = 36
    sP = 52

def load_ptr(a, sreg, off):
    a(f'  s_load_dwordx2 s[{sreg}:{sreg+1}], s[0:1], {off}')

def emit_ws_srd(a):
    a(f'  s_load_dwordx2 s[50:51], s[0:1], {D_WS}\n  s_waitcnt lgkmcnt(0)')
    srd(a, T.sWS, 's50', 's51', WS_BYTES)

def emit_ln(a, sId, sc=''):
    load_ptr(a, 52, A_X)
    a(f'''  s_lshl_b32 s40, s{sId}, 3
  s_lshl_b32 s41, s{T.sW}, 1
  s_add_u32 s40, s40, s41
  s_lshl_b32 s40, s40, 11
  v_lshlrev_b32 v1, 4, v0
  s_waitcnt lgkmcnt(0)''')
    srd(a, 8, 's52', 's53', 2048*1024*2)
    for r in range(2):
        for h in range(2):
            a(f'  buffer_load_dwordx4 {vr(4 + 8*r + 4*h, 4)}, v1, s[8:11], s40 offen offset:{r*2048 + h*1024}')
    for r in range(2):
        a(f'  s_waitcnt vmcnt({2 - 2*r})')
        src = 4 + 8*r; f = 24 + 16*r
        for i in range(8):
            a(f'  v_lshlrev_b32 v{f+2*i}, 16, v{src+i}')
            a(f'  v_and_b32 v{f+2*i+1}, 0xffff0000, v{src+i}')
    def wave_sum(reg, tmp):
        for ctrl in ('quad_perm:[1,0,3,2]', 'quad_perm:[2,3,0,1]', 'row_half_mirror', 'row_mirror'):
            a(f'  s_nop 1\n  v_add_f32_dpp v{reg}, v{reg}, v{reg} {ctrl} row_mask:0xf bank_mask:0xf')
        a(f'''  v_mov_b32 v{tmp}, v{reg}
  s_nop 1
  v_permlane16_swap_b32 v{reg}, v{tmp}
  v_add_f32 v{reg}, v{reg}, v{tmp}
  v_mov_b32 v{tmp}, v{reg}
  s_nop 1
  v_permlane32_swap_b32 v{reg}, v{tmp}
  v_add_f32 v{reg}, v{reg}, v{tmp}''')
    for r in range(2):
        f = 24 + 16*r; s = 56 + r
        a(f'  v_add_f32 v{s}, v{f}, v{f+1}')
        for i in range(2, 16): a(f'  v_add_f32 v{s}, v{s}, v{f+i}')
        wave_sum(s, 58)
        a(f'  v_mul_f32 v{s}, 0x3a800000, v{s}       ; /1024')
        for i in range(16): a(f'  v_sub_f32 v{f+i}, v{f+i}, v{s}')
        a(f'  v_mul_f32 v{s}, v{f}, v{f}')
        for i in range(1, 16): a(f'  v_fmac_f32 v{s}, v{f+i}, v{f+i}')
        wave_sum(s, 58)
        a(f'''  v_mov_b32 v59, 0x3727c5ac             ; 1e-5
  v_fmac_f32 v59, 0x3a800000, v{s}
  v_rsq_f32 v59, v59
  s_nop 0''')
        for i in range(16): a(f'  v_mul_f32 v{f+i}, v{f+i}, v59')
        src = 4 + 8*r
        for i in range(8): a(f'  v_cvt_pk_bf16_f32 v{src+i}, v{f+2*i}, v{f+2*i+1}')
        for h in range(2):
            a(f'  buffer_store_dwordx4 {vr(src + 4*h, 4)}, v1, s[{T.sWS}:{T.sWS+3}], s40 offen offset:{r*2048 + h*1024}{sc}')

def emit_ring_base(a, dst, tmp):
    a(f'''  s_add_u32 s{dst}, s{T.sWS}, {RING}
  s_addc_u32 s{dst+1}, s{T.sWS+1}, 0
  s_sub_u32 s{tmp}, 0, s{dst}
  s_and_b32 s{tmp}, s{tmp}, 0x3fffff
  s_add_u32 s{dst}, s{dst}, s{tmp}
  s_addc_u32 s{dst+1}, s{dst+1}, 0''')
def emit_ring_init(a, sId, sc=''):
    emit_ring_base(a, 52, 40)
    srd(a, 8, 's52', 's53', 4*MB)
    a(f'''  s_lshl_b32 s40, s{sId}, 14
  s_lshl_b32 s41, s{T.sW}, 12
  s_add_u32 s40, s40, s41
  v_lshlrev_b32 v1, 4, v0
  v_mov_b32 v4, -1
  v_mov_b32 v5, -1
  v_mov_b32 v6, -1
  v_mov_b32 v7, -1''')
    for i in range(4):
        a(f'  buffer_store_dwordx4 v[4:7], v1, s[8:11], s40 offen offset:{i*1024}{sc}')

def emit_wo_repack(a, sKs, sc=''):
    load_ptr(a, 52, A_WO)
    a(f'''  s_lshl_b32 s40, s{sKs}, 16            ; 32 rows * 2048
  s_lshl_b32 s41, s{T.sW}, 9
  s_add_u32 s40, s40, s41
  s_lshl_b32 s42, s{T.sW}, 14
  s_waitcnt lgkmcnt(0)''')
    srd(a, 8, 's52', 's53', 4096*1024*2)
    lanesum(a, 'v1', [(5,1,11),(0,5,4)], 0)
    a('  s_mov_b32 s43, s42')
    for i in range(16):
        a(f'''  s_mov_b32 m0, s43
  s_add_u32 s43, s43, 1024
  buffer_load_dwordx4 v1, s[8:11], s40 offen lds
  s_add_u32 s40, s40, 4096''')
    lanesum(a, 'v2', [(4,2,11),(2,2,9),(0,2,4)], 0, ['s42'])
    a(f'''  s_lshl_b32 s40, s{T.sW}, 21           ; 16w*128*1024
  s_lshl_b32 s41, s{sKs}, 10
  s_add_u32 s40, s40, s41
  s_add_u32 s40, s40, {WOF}
  v_lshlrev_b32 v3, 4, v0
  s_waitcnt vmcnt(0)''')
    for t in range(16):
        p, h = t >> 1, t & 1; r = 8 + 4*(t & 3)
        a(f'''  ds_read_b64_tr_b16 {vr(r,2)}, v2 offset:{p*64 + h*8}
  ds_read_b64_tr_b16 {vr(r+2,2)}, v2 offset:{p*64 + h*8 + 16*512}
  s_waitcnt lgkmcnt(0)
  buffer_store_dwordx4 {vr(r,4)}, v3, s[{T.sWS}:{T.sWS+3}], s40 offen{sc}
  s_add_u32 s40, s40, {128*1024}''')

def emit_mall_warm(a, sX, sJ, sW, vJ=160, vA=161, which=(B_WG, B_WU, B_WD)):
    a(f'''  s_lshl_b32 s50, s{sX}, 5
  s_add_u32 s50, s50, s{sJ}
  s_lshl_b32 s50, s50, 2
  s_add_u32 s50, s50, s{sW}
  s_lshl_b32 s50, s50, 13
  v_lshlrev_b32 v{vA}, 7, v0
  v_add_u32 v{vA}, s50, v{vA}
  v_add_u32 v{vA+1}, 0x400000, v{vA}''')
    for arg in which:
        load_ptr(a, 50, arg)
        a('  s_waitcnt lgkmcnt(0)')
        srd(a, 52, 's50', 's51', 1024*3584*2)
        a(f'  buffer_load_dword v{vJ}, v{vA}, s[52:55], 0 offen\n  buffer_load_dword v{vJ}, v{vA+1}, s[52:55], 0 offen')
    a('  s_waitcnt vmcnt(0)')

TY_K, TY_Q, TY_GU, TY_D, TY_V, TY_D2 = 0, 1, 2, 3, 4, 5

def emit_gemm_params(a, ty):
    g = GM
    if ty in (TY_K, TY_Q, TY_V):
        load_ptr(a, 52, {TY_K: A_WK, TY_Q: A_WQ, TY_V: A_WV}[ty])
        a(f'''  s_mov_b32 s{T.sLdx}, 2048
  s_mov_b32 s{T.sLdw}, 8192
  s_mul_i32 s{g.sOX}, s{T.sM}, {256*2048}
  s_add_u32 s{g.sOX}, s{g.sOX}, {XN}
  s_lshl_b32 s{g.sOW0}, s{T.sN}, 9
  s_add_u32 s{g.sOW1}, s{g.sOW0}, 256
  s_mov_b32 s{T.sNL}, {1024//128 - 2}
  s_waitcnt lgkmcnt(0)''')
        srd(a, g.sW0, 's52', 's53', 1024*4096*2); srd(a, g.sW1, 's52', 's53', 1024*4096*2)
    elif ty == TY_GU:
        load_ptr(a, 52, B_WG); load_ptr(a, 54, B_WU)
        a(f'''  s_mov_b32 s{T.sLdx}, 2048
  s_mov_b32 s{T.sLdw}, 7168
  s_mul_i32 s{g.sOX}, s{T.sM}, {256*2048}
  s_add_u32 s{g.sOX}, s{g.sOX}, {XN}
  s_lshl_b32 s{g.sOW0}, s{T.sN}, 8
  s_mov_b32 s{g.sOW1}, s{g.sOW0}
  s_mov_b32 s{T.sNL}, {1024//128 - 2}
  s_waitcnt lgkmcnt(0)''')
        srd(a, g.sW0, 's52', 's53', 1024*3584*2); srd(a, g.sW1, 's54', 's55', 1024*3584*2)
    else:
        load_ptr(a, 52, B_WD)
        a(f'''  s_mov_b32 s{T.sLdx}, 7168
  s_mov_b32 s{T.sLdw}, 2048
  s_mul_i32 s{g.sOX}, s{T.sM}, {256*7168}
  s_add_u32 s{g.sOX}, s{g.sOX}, {H}
  s_lshl_b32 s{g.sOW0}, s{T.sN}, {9 if ty == TY_D else 8}
  s_add_u32 s{g.sOW1}, s{g.sOW0}, 256
  s_mov_b32 s{T.sNL}, {3584//128 - 2}
  s_waitcnt lgkmcnt(0)''')
        srd(a, g.sW0, 's52', 's53', 3584*1024*2); srd(a, g.sW1, 's52', 's53', 3584*1024*2)
    a(f'''  s_mov_b32 s{g.sX}, s{T.sWS}
  s_mov_b32 s{g.sX+1}, s{T.sWS+1}
  s_mov_b32 s{g.sX+2}, s{T.sWS+2}
  s_mov_b32 s{g.sX+3}, s{T.sWS+3}''')

def emit_gemm_main(a, swap, lab, nj=8):
    g = GM
    nd = 8 if nj == 8 else 6
    setup_lane_consts(a, f's{T.sLdx}', f's{T.sLdw}')
    PF = gemmlib.PF
    if gemmlib.DP and nj == 8:
        return emit_gemm_main_asym(a, swap, lab)
    for st in range(PF):
        D, adv = dma_ops(st, nj)
        for m0, ld in D:
            a('  ' + m0); a('  s_nop 0'); a('  ' + ld)
        for x in adv: a('  ' + x)
    a(f'  s_waitcnt vmcnt({(PF-1)*nd})\n  s_barrier')
    for r in read_ops(0, 0, nj): a('  ' + r)
    vm = (PF-2)*nd
    for s in range(4): step(a, s, swap, first=(s == 0), vm=vm, nj=nj)
    a(f'  s_mov_b32 s{g.sLoop}, s{T.sNL}')
    a(f'{lab}_loop:')
    for s in range(4): step(a, s, swap, vm=vm, nj=nj)
    a(f'''  s_sub_u32 s{g.sLoop}, s{g.sLoop}, 1
  s_cmp_lg_u32 s{g.sLoop}, 0
  s_cbranch_scc1 {lab}_loop''')
    if PF == 3:
        step(a, 0, swap, vm=nd, nj=nj)
        step(a, 1, swap, dma=False, vm=nd, nj=nj)
        step(a, 2, swap, dma=False, vm=0, nj=nj)
    else:
        step(a, 0, swap, dma=False, vm=2*nd, nj=nj)
        step(a, 1, swap, dma=False, vm=nd, nj=nj)
        step(a, 2, swap, dma=False, vm=0, nj=nj)
    step(a, 3, swap, dma=False, reads=False, vm=None, nj=nj)
    a('  s_nop 7')

def emit_gemm_main_asym(a, swap, lab):
    from gemmlib import setup_asym, dma_ops2, step2, pf_ops
    g = GM; PF = gemmlib.PF; DP = gemmlib.DP; nd = 16
    assert PF == 4 and DP % 4 == 0 and DP >= 8
    setup_asym(a, f's{T.sLdx}', f's{T.sLdw}')
    a(f'  s_cmp_ge_u32 s{g.sW}, 2\n  s_cbranch_scc1 {lab}_pf')
    for st in range(PF):
        if st == PF - 1: a(f'  s_waitcnt vmcnt({2*nd})')
        D, adv = dma_ops2(st)
        for m0, ld in D:
            a('  ' + m0); a('  s_nop 0'); a('  ' + ld)
        for x in adv: a('  ' + x)
    a('  s_barrier')
    for r in read_ops(0, 0, 8): a('  ' + r)
    vm = 2*nd
    for s in range(4): step2(a, s, swap, 'd', first=(s == 0), vm=vm)
    a(f'  s_mov_b32 s{g.sLoop}, s{T.sNL}')
    a(f'{lab}_loop:')
    for s in range(4): step2(a, s, swap, 'd', vm=vm)
    a(f'''  s_sub_u32 s{g.sLoop}, s{g.sLoop}, 1
  s_cmp_lg_u32 s{g.sLoop}, 0
  s_cbranch_scc1 {lab}_loop''')
    step2(a, 0, swap, 'd', dma=False, vm=2*nd)
    step2(a, 1, swap, 'd', dma=False, vm=nd)
    step2(a, 2, swap, 'd', dma=False, vm=0)
    step2(a, 3, swap, 'd', dma=False, reads=False)
    a(f'  s_branch {lab}_join')
    a(f'''{lab}_pf:
  s_cmp_eq_u32 s{g.sW}, 2
  s_cbranch_scc1 {lab}_w0
  s_mov_b32 s{g.sW0}, s{g.sW1}
  s_mov_b32 s{g.sW0+1}, s{g.sW1+1}
  s_mov_b32 s{g.sW0+2}, s{g.sW1+2}
  s_mov_b32 s{g.sW0+3}, s{g.sW1+3}
  s_mov_b32 s{g.sOW0}, s{g.sOW1}
{lab}_w0:
  s_lshl_b32 s40, s{g.sKW}, 2
  s_add_u32 s{g.sOW0}, s{g.sOW0}, s40
  s_add_u32 s{g.sOX}, s{g.sOX}, {PF*64}''')
    for j in range(PF, DP):
        for x in pf_ops(j, (j-PF)*64): a('  ' + x)
        a(f'  v_add_u32 v{g.vPW}, s{g.sKW}, v{g.vPW}')
    a('  s_barrier')
    for r in read_ops(0, 0, 8): a('  ' + r)
    for s in range(4): step2(a, s, swap, 'p', first=(s == 0))
    a(f'  s_sub_u32 s{g.sLoop}, s{T.sNL}, {DP//4 - 1}')
    a(f'{lab}_ploop:')
    for s in range(4): step2(a, s, swap, 'p')
    a(f'''  s_sub_u32 s{g.sLoop}, s{g.sLoop}, 1
  s_cmp_lg_u32 s{g.sLoop}, 0
  s_cbranch_scc1 {lab}_ploop
  s_mov_b32 s{g.sLoop}, {DP//4 - 1}''')
    a(f'{lab}_qloop:')
    for s in range(4): step2(a, s, swap, 'p', dma=False)
    a(f'''  s_sub_u32 s{g.sLoop}, s{g.sLoop}, 1
  s_cmp_lg_u32 s{g.sLoop}, 0
  s_cbranch_scc1 {lab}_qloop''')
    for s in range(3): step2(a, s, swap, 'p', dma=False)
    step2(a, 3, swap, 'p', dma=False, reads=False)
    a(f'  s_waitcnt vmcnt(0)\n{lab}_join:\n  s_nop 7')

def accn(i, j, r): return (i*8 + j)*4 + r

def emit_epi_kq(a, base, sc=''):
    a(f'''  v_and_b32 v20, 63, v0
  v_and_b32 v21, 15, v20
  v_bfe_u32 v22, v20, 4, 1
  v_bfe_u32 v24, v20, 5, 1
  v_lshlrev_b32 v23, 4, v21             ; tok*16
  v_lshl_add_u32 v23, v22, 9, v23       ; (g&1)*2*256
  v_lshl_add_u32 v23, v24, 8, v23       ; (g>>1)*256
  s_lshr_b32 s40, s{T.sW}, 1            ; wm
  s_and_b32 s41, s{T.sW}, 1             ; wn
  s_lshl_b32 s42, s{T.sM}, 3
  s_lshl_b32 s43, s40, 2
  s_add_u32 s42, s42, s43
  s_lshl_b32 s42, s42, 18
  s_lshl_b32 s43, s{T.sN}, 14           ; head 2n * 8192
  s_add_u32 s42, s42, s43
  s_lshl_b32 s43, s41, 11
  s_add_u32 s42, s42, s43
  s_add_u32 s45, s42, {base}''')
    n = 0
    for i in range(8):
        for rho in range(2):
            a(f'  s_add_u32 s46, s45, {(i >> 1)*262144 + (i & 1)*4096 + rho*8192}')
            for q in range(2):
                j = 4*rho + 2*q; t = 32 + (n & 1)*16; n += 1
                for u in range(8):
                    a(f'  v_accvgpr_read_b32 v{t+u}, a{accn(i, j + (u >> 2), u & 3)}')
                a(f'''  v_cvt_pk_bf16_f32 v{t+8}, v{t}, v{t+1}
  v_cvt_pk_bf16_f32 v{t+9}, v{t+2}, v{t+3}
  v_cvt_pk_bf16_f32 v{t+10}, v{t+4}, v{t+5}
  v_cvt_pk_bf16_f32 v{t+11}, v{t+6}, v{t+7}
  s_nop 1
  v_permlane16_swap_b32 v{t+8}, v{t+10}
  v_permlane16_swap_b32 v{t+9}, v{t+11}
  buffer_store_dwordx4 {vr(t+8,4)}, v23, s[{T.sWS}:{T.sWS+3}], s46 offen offset:{q*1024}{sc}''')

def emit_epi_v(a, sc=''):
    a(f'''  v_and_b32 v20, 63, v0
  v_lshlrev_b32 v23, 4, v20
  s_lshr_b32 s40, s{T.sW}, 1
  s_and_b32 s41, s{T.sW}, 1
  s_lshl_b32 s42, s{T.sM}, 3
  s_lshl_b32 s43, s40, 2
  s_add_u32 s42, s42, s43
  s_lshl_b32 s42, s42, 18
  s_lshl_b32 s43, s{T.sN}, 14
  s_add_u32 s42, s42, s43
  s_lshl_b32 s43, s41, 12
  s_add_u32 s42, s42, s43
  s_add_u32 s45, s42, {VT}''')
    n = 0
    for ip in range(4):
        for rho in range(2):
            a(f'  s_add_u32 s46, s45, {ip*262144 + rho*8192}')
            for jj in range(4):
                j = 4*rho + jj; t = 32 + (n & 1)*16; n += 1
                for u in range(8):
                    a(f'  v_accvgpr_read_b32 v{t+u}, a{accn(2*ip + (u >> 2), j, u & 3)}')
                a(f'''  v_cvt_pk_bf16_f32 v{t+8}, v{t}, v{t+1}
  v_cvt_pk_bf16_f32 v{t+9}, v{t+2}, v{t+3}
  v_cvt_pk_bf16_f32 v{t+10}, v{t+4}, v{t+5}
  v_cvt_pk_bf16_f32 v{t+11}, v{t+6}, v{t+7}
  buffer_store_dwordx4 {vr(t+8,4)}, v23, s[{T.sWS}:{T.sWS+3}], s46 offen offset:{jj*1024}{sc}''')

def rowmajor_addr(a, ld, coltile_shift, base):
    a(f'''  v_and_b32 v20, 63, v0
  v_and_b32 v21, 15, v20
  v_bfe_u32 v22, v20, 4, 1
  v_bfe_u32 v24, v20, 5, 1
  s_lshr_b32 s40, s{T.sW}, 1
  s_and_b32 s41, s{T.sW}, 1
  s_lshl_b32 s42, s{T.sM}, 8
  s_lshl_b32 s43, s40, 7
  s_add_u32 s42, s42, s43
  s_mul_i32 s42, s42, {ld}
  v_mul_u32_u24 v23, {ld}, v21
  v_lshl_add_u32 v23, v22, 5, v23       ; (g&1)*16 cols
  v_lshl_add_u32 v23, v24, 4, v23       ; (g>>1)*8 cols
  s_lshl_b32 s43, s{T.sN}, {coltile_shift}
  s_add_u32 s42, s42, s43
  s_lshl_b32 s43, s41, 7
  s_add_u32 s42, s42, s43
  s_add_u32 s45, s42, {base}''')

def emit_epi_gu(a, sc=''):
    rowmajor_addr(a, 7168, 8, H)
    n = 0
    for i in range(8):
        for q in range(2):
            t = 32 + (n & 1)*24; n += 1
            for u in range(8):
                a(f'  v_accvgpr_read_b32 v{t+u}, a{accn(i, 2*q + (u >> 2), u & 3)}')
                a(f'  v_accvgpr_read_b32 v{t+8+u}, a{accn(i, 4 + 2*q + (u >> 2), u & 3)}')
            for u in range(8): a(f'  v_max_f32 v{t+u}, 0, v{t+u}')
            for u in range(8): a(f'  v_mul_f32 v{t+u}, v{t+u}, v{t+8+u}')
            a(f'''  v_cvt_pk_bf16_f32 v{t+16}, v{t}, v{t+1}
  v_cvt_pk_bf16_f32 v{t+17}, v{t+2}, v{t+3}
  v_cvt_pk_bf16_f32 v{t+18}, v{t+4}, v{t+5}
  v_cvt_pk_bf16_f32 v{t+19}, v{t+6}, v{t+7}
  s_nop 1
  v_permlane16_swap_b32 v{t+16}, v{t+18}
  v_permlane16_swap_b32 v{t+17}, v{t+19}
  buffer_store_dwordx4 {vr(t+16,4)}, v23, s[{T.sWS}:{T.sWS+3}], s45 offen offset:{q*64}{sc}''')
        a(f'  s_add_u32 s45, s45, {16*7168}')

def emit_epi_d(a, sc='', nj=8):
    rowmajor_addr(a, 2048, 9 if nj == 8 else 8, G)
    n = 0
    for i in range(8):
        for rho in range(nj // 4):
            for q in range(2):
                j = 4*rho + 2*q; t = 32 + (n & 1)*24; n += 1
                for u in range(8): a(f'  v_accvgpr_read_b32 v{t+u}, a{accn(i, j + (u >> 2), u & 3)}')
                for u in range(8): a(f'  v_mul_f32 v{t+8+u}, 0xbfb8aa3b, v{t+u}')
                for u in range(8): a(f'  v_exp_f32 v{t+8+u}, v{t+8+u}')
                for u in range(8): a(f'  v_add_f32 v{t+8+u}, 1.0, v{t+8+u}')
                for u in range(8): a(f'  v_rcp_f32 v{t+8+u}, v{t+8+u}')
                for u in range(8): a(f'  v_mul_f32 v{t+u}, v{t+u}, v{t+8+u}')
                a(f'''  v_cvt_pk_bf16_f32 v{t+16}, v{t}, v{t+1}
  v_cvt_pk_bf16_f32 v{t+17}, v{t+2}, v{t+3}
  v_cvt_pk_bf16_f32 v{t+18}, v{t+4}, v{t+5}
  v_cvt_pk_bf16_f32 v{t+19}, v{t+6}, v{t+7}
  s_nop 1
  v_permlane16_swap_b32 v{t+16}, v{t+18}
  v_permlane16_swap_b32 v{t+17}, v{t+19}
  buffer_store_dwordx4 {vr(t+16,4)}, v23, s[{T.sWS}:{T.sWS+3}], s45 offen offset:{rho*256 + q*64}{sc}''')
        a(f'  s_add_u32 s45, s45, {16*2048}')

def emit_attn(a, sSeg, sHg, sc=''):
    vQ, vK, vV, vKM, vVM = 16, 48, 80, 112, 128
    vS = 136
    vP = 160
    vPa, vPb = 164, 166
    vOne = 168; vSum = 172; vPV = 176
    vT, vT2, vRi = 208, 209, 210
    vPk = 212
    vNinf = 216
    WS = f's[{T.sWS}:{T.sWS+3}]'
    a(f'''  s_lshl_b32 s40, s{sHg}, 2
  s_add_u32 s40, s40, s{T.sW}           ; head
  s_lshl_b32 s41, s{sSeg}, 18
  s_lshl_b32 s42, s40, 13
  s_add_u32 s41, s41, s42               ; (seg*32+head)*8192
  s_add_u32 s42, s41, {Q}
  s_add_u32 s43, s41, {K}
  s_add_u32 s44, s41, {VT}
  s_lshl_b32 s45, s{sSeg}, 16
  s_lshl_b32 s46, s40, 11
  s_add_u32 s45, s45, s46               ; (seg*32+head)*2048
  s_add_u32 s46, s45, {KM}
  s_add_u32 s47, s45, {VM}
  v_lshlrev_b32 v1, 4, v0
  v_add_u32 v2, 4096, v1
  v_lshlrev_b32 v3, 3, v0''')
    lanesum(a, 'v4', [(2,2,7),(0,1,6),(4,2,4)], 0)
    for ks in range(4): a(f'  buffer_load_dwordx4 {vr(vKM+4*ks,4)}, v4, {WS}, s46 offen offset:{ks*512}')
    for i in range(8): a(f'  buffer_load_dwordx4 {vr(vQ+4*i,4)}, v{1 + (i >> 2)}, {WS}, s42 offen offset:{(i & 3)*1024}')
    for i in range(8): a(f'  buffer_load_dwordx4 {vr(vK+4*i,4)}, v{1 + (i >> 2)}, {WS}, s43 offen offset:{(i & 3)*1024}')
    for es in range(4): a(f'  buffer_load_dwordx2 {vr(vVM+2*es,2)}, v3, {WS}, s47 offen offset:{es*512}')
    for i in range(8): a(f'  buffer_load_dwordx4 {vr(vV+4*i,4)}, v{1 + (i >> 2)}, {WS}, s44 offen offset:{(i & 3)*1024}')
    a(f'''  v_and_b32 v5, 15, v0
  v_lshrrev_b32 v6, 4, v0
  v_lshlrev_b32 v6, 2, v6''')
    for r in range(4):
        a(f'  v_add_u32 v7, {r}, v6\n  v_cmp_le_u32 s[{54+2*r}:{55+2*r}], v7, v5')
    for i in range(4): a(f'  v_mov_b32 v{vOne+i}, 0x3f803f80')
    a(f'''  v_mov_b32 v{vNinf}, 0xff800000
  v_mov_b32 v{vPa+1}, 0
  v_mov_b32 v{vPb}, 0
  s_mov_b32 s48, 0x3e0293ee             ; 128^-0.5 * log2(e)
  s_lshl_b32 s49, s{sSeg}, 18
  s_lshl_b32 s50, s40, 12
  s_add_u32 s49, s49, s50
  s_add_u32 s49, s49, {O}
  s_waitcnt vmcnt(12)''')
    for qt in range(2):
        S = vS + 12*qt
        for ks in range(4):
            q = vr(vQ + 16*qt + 4*ks, 4)
            a(f'  v_mfma_f32_16x16x32_bf16 {vr(S,4)}, {vr(vKM+4*ks,4)}, {q}, {0 if ks == 0 else vr(S,4)}')
            for kt in range(qt + 1):
                D = vr(S + 4 + 4*kt, 4)
                a(f'  v_mfma_f32_16x16x32_bf16 {D}, {vr(vK+16*kt+4*ks,4)}, {q}, {0 if ks == 0 else D}')
    a('  s_nop 7')
    for qt in range(2):
        S = vS + 12*qt; dg = S + 4 + 4*qt
        for r in range(4): a(f'  v_cndmask_b32 v{dg+r}, v{vNinf}, v{dg+r}, s[{54+2*r}:{55+2*r}]')
        regs = [S, S+1] + list(range(S+4, S+8+4*qt))
        a(f'  v_max3_f32 v{vT}, v{regs[0]}, v{regs[1]}, v{regs[2]}')
        i = 3
        while i < len(regs):
            if i + 1 < len(regs): a(f'  v_max3_f32 v{vT}, v{vT}, v{regs[i]}, v{regs[i+1]}'); i += 2
            else: a(f'  v_max_f32 v{vT}, v{vT}, v{regs[i]}'); i += 1
        a(f'''  v_mov_b32 v{vT2}, v{vT}
  s_nop 1
  v_permlane32_swap_b32 v{vT}, v{vT2}
  v_max_f32 v{vT}, v{vT}, v{vT2}
  v_mov_b32 v{vT2}, v{vT}
  s_nop 1
  v_permlane16_swap_b32 v{vT}, v{vT2}
  v_max_f32 v{vT}, v{vT}, v{vT2}
  v_mul_f32 v{vT}, s48, v{vT}''')
        for r in regs: a(f'  v_fma_f32 v{r}, v{r}, s48, -v{vT}')
        for r in regs: a(f'  v_exp_f32 v{r}, v{r}')
        a(f'''  s_nop 0
  v_cvt_pk_bf16_f32 v{vPa}, v{S}, v{S+1}
  v_cvt_pk_bf16_f32 v{vPb+1}, v{S}, v{S+1}''')
        for i in range(2 + 2*qt): a(f'  v_cvt_pk_bf16_f32 v{vP+i}, v{S+4+2*i}, v{S+5+2*i}')
        if qt == 0: a('  s_waitcnt vmcnt(0)')
        a('  s_nop 1')
        a(f'  v_mfma_f32_16x16x16_bf16 {vr(vSum,4)}, {vr(vOne,2)}, {vr(vPa,2)}, 0')
        for tau in range(8):
            es, tp = tau >> 1, tau & 1
            a(f'  v_mfma_f32_16x16x16_bf16 {vr(vPV+4*tau,4)}, {vr(vVM+2*es,2)}, {vr(vPb if tp else vPa,2)}, 0')
        if qt == 0:
            a(f'  v_mfma_f32_16x16x16_bf16 {vr(vSum,4)}, {vr(vOne,2)}, {vr(vP,2)}, {vr(vSum,4)}')
            for tau in range(8):
                a(f'  v_mfma_f32_16x16x16_bf16 {vr(vPV+4*tau,4)}, {vr(vV+4*tau,2)}, {vr(vP,2)}, {vr(vPV+4*tau,4)}')
        else:
            a(f'  v_mfma_f32_16x16x32_bf16 {vr(vSum,4)}, {vr(vOne,4)}, {vr(vP,4)}, {vr(vSum,4)}')
            for tau in range(8):
                a(f'  v_mfma_f32_16x16x32_bf16 {vr(vPV+4*tau,4)}, {vr(vV+4*tau,4)}, {vr(vP,4)}, {vr(vPV+4*tau,4)}')
        a(f'''  s_nop 7
  v_rcp_f32 v{vRi}, v{vSum}
  s_nop 0''')
        for p in range(4):
            b = vPV + 8*p
            for i in range(8): a(f'  v_mul_f32 v{b+i}, v{b+i}, v{vRi}')
            t = vPk + 4*(p & 1)*0
            t = vPk if (p & 1) == 0 else 220
            for i in range(4): a(f'  v_cvt_pk_bf16_f32 v{t+i}, v{b+2*i}, v{b+2*i+1}')
            a(f'  buffer_store_dwordx4 {vr(t,4)}, v1, {WS}, s49 offen offset:{p*1024}{sc}')
        if qt == 0: a(f'  s_add_u32 s49, s49, {128*1024}\n  s_nop 1')

def emit_wo_gemm(a, sTt, sNt, MT, NT, depth=6, sc='', lds0=0):
    WS = f's[{T.sWS}:{T.sWS+3}]'
    nf = MT + NT
    F0 = 32
    assert F0 + depth*nf*4 <= 248
    ACC = lambda nt, mt: (nt*MT + mt)*4
    a(f'''  s_lshl_b32 s40, s{T.sW}, 15
  s_lshl_b32 s41, s{sNt}, 17
  s_add_u32 s41, s41, s40
  s_add_u32 s41, s41, {WOF}
  s_lshl_b32 s42, s{sTt}, 17
  s_add_u32 s42, s42, s40
  s_add_u32 s42, s42, {O}
  v_lshlrev_b32 v1, 4, v0''')
    for nt in range(NT): a(f'  s_add_u32 s{60+nt}, s41, {nt*131072}')
    for mt in range(MT): a(f'  s_add_u32 s{60+NT+mt}, s42, {mt*131072}')
    def loads(ks):
        st = ks % depth; L = []
        for f in range(nf):
            r = F0 + (st*nf + f)*4
            L.append(f'buffer_load_dwordx4 {vr(r,4)}, v{1 + ((ks >> 2) & 1)}, {WS}, s{60+f} offen offset:{(ks & 3)*1024}')
        return L
    a('  v_add_u32 v2, 4096, v1')
    def bump(ks):
        if ks % 4 == 0 and ks >= 8: a(f'  v_add_u32 v{1 + ((ks >> 2) & 1)}, 8192, v{1 + ((ks >> 2) & 1)}')
    for ks in range(depth):
        bump(ks)
        for l in loads(ks): a('  ' + l)
    for ks in range(32):
        rem = min(depth - 1, 31 - ks)
        a(f'  s_waitcnt vmcnt({rem*nf})')
        st = ks % depth
        for nt in range(NT):
            for mt in range(MT):
                A = vr(F0 + (st*nf + nt)*4, 4); B = vr(F0 + (st*nf + NT + mt)*4, 4)
                D = ar(ACC(nt, mt), 4)
                a(f'  v_mfma_f32_16x16x32_bf16 {D}, {A}, {B}, {0 if ks == 0 else D}')
        if ks + depth < 32:
            a('  s_nop 2')
            bump(ks + depth)
            for l in loads(ks + depth): a('  ' + l)
    ntile = MT*NT
    a(f'''  s_mul_i32 s40, s{T.sW}, {ntile*1024}
  s_add_u32 s40, s40, {lds0}
  v_lshlrev_b32 v3, 4, v0
  v_add_u32 v4, s40, v3
  v_add_u32 v3, {lds0}, v3
  v_add_u32 v6, 0x10000, v3
  s_nop 7''')
    for t in range(ntile): a(f'  ds_write_b128 v4, {ar(4*t,4)} offset:{t*1024}')
    items = [(mt, np_) for mt in range(MT) for np_ in range(NT//2)]
    per = (len(items) + 3)//4
    load_ptr(a, 52, A_X); load_ptr(a, 54, D_OUT)
    lanesum(a, 'v5', [(0,4,11),(4,2,4)], 0)
    a('  s_waitcnt lgkmcnt(0)')
    srd(a, 8, 's52', 's53', 2048*1024*2); srd(a, T.sOut, 's54', 's55', 2048*1024*2)
    a(f'''  s_lshl_b32 s43, s{sTt}, 15
  s_lshl_b32 s44, s{sNt}, 5
  s_add_u32 s43, s43, s44''')
    lab = a.label('L_wo')
    a('  s_barrier')
    for w in range(4):
        mine = items[w*per:(w+1)*per]
        if not mine:
            continue
        a(f'  s_cmp_eq_u32 s{T.sW}, {w}\n  s_cbranch_scc0 {lab}_n{w}')
        for k, (mt, np_) in enumerate(mine):
            a(f'  s_add_u32 s{44+k}, s43, {mt*32768 + np_*64}')
            a(f'  buffer_load_dwordx4 {vr(16+8*k,4)}, v5, s[8:11], s{44+k} offen')
            a(f'  s_add_u32 s{48}, s{44+k}, {G}')
            a(f'  buffer_load_dwordx4 {vr(20+8*k,4)}, v5, {WS}, s48 offen')
        for k, (mt, np_) in enumerate(mine):
            Z = 64 + 0
            for h in range(2):
                t = (2*np_ + h)*MT + mt
                for w2 in range(4):
                    off = (w2*ntile + t)*1024
                    a(f'  ds_read_b128 {vr(Z + (h*4 + w2)*4, 4)}, v{3 if off < 65536 else 6} offset:{off & 0xffff}')
            a('  s_waitcnt lgkmcnt(0)')
            for h in range(2):
                b = Z + h*16
                a(f'''  v_pk_add_f32 {vr(b,2)}, {vr(b,2)}, {vr(b+4,2)}
  v_pk_add_f32 {vr(b+2,2)}, {vr(b+2,2)}, {vr(b+6,2)}
  v_pk_add_f32 {vr(b+8,2)}, {vr(b+8,2)}, {vr(b+12,2)}
  v_pk_add_f32 {vr(b+10,2)}, {vr(b+10,2)}, {vr(b+14,2)}
  v_pk_add_f32 {vr(b,2)}, {vr(b,2)}, {vr(b+8,2)}
  v_pk_add_f32 {vr(b+2,2)}, {vr(b+2,2)}, {vr(b+10,2)}''')
            a(f'  s_waitcnt vmcnt({2*(len(mine) - 1 - k)  + k})')
            X = 16 + 8*k; Gv = X + 4; U = 100
            for i in range(4):
                a(f'''  v_lshlrev_b32 v{U}, 16, v{X+i}
  v_and_b32 v{U+1}, 0xffff0000, v{X+i}
  v_lshlrev_b32 v{U+2}, 16, v{Gv+i}
  v_and_b32 v{U+3}, 0xffff0000, v{Gv+i}''')
                s0 = Z + (i >> 1)*16 + (i & 1)*2
                a(f'''  v_fmac_f32 v{U}, v{s0}, v{U+2}
  v_fmac_f32 v{U+1}, v{s0+1}, v{U+3}
  v_cvt_pk_bf16_f32 v{U+4+i}, v{U}, v{U+1}''')
            a(f'  buffer_store_dwordx4 {vr(U+4,4)}, v5, s[{T.sOut}:{T.sOut+3}], s{44+k} offen{sc}\n  s_nop 1')
        a(f'  s_branch {lab}_done\n{lab}_n{w}:')
    a(f'{lab}_done:')

def emit_wo_big(a, sTt, sNt, lab, sc='', NS=5):
    WS = f's[{T.sWS}:{T.sWS+3}]'
    SLOT = 24576
    vOff, vRT, vRN, vLT, vLN = 1, 2, 3, 4, 5
    FR = [16, 64]
    sP = 60
    sRd, sWr, sM0, sLoop = 66, 67, 68, 69
    ACC = lambda nt, mt: (nt*4 + mt)*4
    a(f'''  s_lshl_b32 s40, s{sTt}, 17
  s_add_u32 s40, s40, {O}
  s_lshl_b32 s41, s{sNt}, 17
  s_add_u32 s41, s41, {WOF}
  s_sub_u32 s41, s41, {8*131072}
  s_mul_i32 s42, s{T.sW}, 6''')
    for i in range(6):
        a(f'''  s_add_u32 s43, s42, {i}
  s_cmp_lt_u32 s43, 8
  s_cselect_b32 s44, s40, s41
  s_lshl_b32 s43, s43, 17
  s_add_u32 s{sP+i}, s44, s43''')
    a(f'''  v_lshlrev_b32 v{vOff}, 4, v0
  s_mul_i32 s{sM0}, s{T.sW}, 6144
  s_lshr_b32 s43, s{T.sW}, 1
  s_lshl_b32 s43, s43, 12
  v_add_u32 v{vLT}, s43, v{vOff}
  s_and_b32 s43, s{T.sW}, 1
  s_lshl_b32 s43, s43, 13
  s_add_u32 s43, s43, 8192
  v_add_u32 v{vLN}, s43, v{vOff}''')
    def dma(static=None):
        o = []
        for i in range(6):
            if static is None: m0 = f's_add_u32 m0, s{sWr}, {i*1024}'
            else: m0 = f's_add_u32 m0, s{sM0}, {static*SLOT + i*1024}'
            o.append((m0, f'buffer_load_dwordx4 v{vOff}, {WS}, s{sP+i} offen lds'))
        return o
    def reads(st):
        b = FR[st]; o = []
        for k in range(4):
            o.append(f'ds_read_b128 {vr(b+4*k,4)}, v{vRT} offset:{k*1024}')
            o.append(f'ds_read_b128 {vr(b+16+8*k,4)}, v{vRN} offset:{2*k*1024}')
            o.append(f'ds_read_b128 {vr(b+20+8*k,4)}, v{vRN} offset:{(2*k+1)*1024}')
        return o
    for st in range(NS):
        for m0, ld in dma(st): a(f'  {m0}\n  s_nop 0\n  {ld}')
        a(f'  v_add_u32 v{vOff}, 1024, v{vOff}')
    a(f'''  s_mov_b32 s{sWr}, s{sM0}
  s_mov_b32 s{sRd}, {SLOT}
  v_mov_b32 v{vRT}, v{vLT}
  v_mov_b32 v{vRN}, v{vLN}
  s_waitcnt vmcnt({(NS-1)*6})
  s_barrier''')
    for r in reads(0): a('  ' + r)
    def step(s, dm, rd, vm, first=False):
        st = s & 1
        a(f'  s_waitcnt vmcnt({vm}) lgkmcnt(0)' if vm is not None else '  s_waitcnt lgkmcnt(0)')
        a('  s_barrier')
        slots = [[] for _ in range(32)]
        if rd:
            slots[0] += [f'v_add_u32 v{vRT}, s{sRd}, v{vLT}', f'v_add_u32 v{vRN}, s{sRd}, v{vLN}']
            for k, r in enumerate(reads(st ^ 1)): slots[1 + 2*k].append(r)
            slots[26] += [f's_add_u32 s{sRd}, s{sRd}, {SLOT}']
            slots[27] += [f's_cmp_eq_u32 s{sRd}, {NS*SLOT}', f's_cselect_b32 s{sRd}, 0, s{sRd}']
        if dm:
            for k, (m0, ld) in enumerate(dma()):
                slots[2 + 4*k].append(m0); slots[4 + 4*k].append(ld)
            slots[28] += [f'v_add_u32 v{vOff}, 1024, v{vOff}', f's_add_u32 s{sWr}, s{sWr}, {SLOT}']
            slots[29] += [f's_sub_u32 s43, s{sWr}, s{sM0}', f's_cmp_eq_u32 s43, {NS*SLOT}']
            slots[30] += [f's_cselect_b32 s{sWr}, s{sM0}, s{sWr}']
        n = 0; b = FR[st]
        for nt in range(8):
            for mt in range(4):
                D = ar(ACC(nt, mt), 4)
                a(f'  v_mfma_f32_16x16x32_bf16 {D}, {vr(b+16+4*nt,4)}, {vr(b+4*mt,4)}, {0 if first else D}')
                for x in slots[n]: a('  ' + x)
                n += 1
    NK = 128; vmf = (NS-2)*6
    step(0, True, True, vmf, first=True); step(1, True, True, vmf)
    nloop = (NK - NS - 2) // 2; rest = NK - 2 - 2*nloop
    a(f'  s_mov_b32 s{sLoop}, {nloop}\n{lab}_loop:')
    step(0, True, True, vmf); step(1, True, True, vmf)
    a(f'''  s_sub_u32 s{sLoop}, s{sLoop}, 1
  s_cmp_lg_u32 s{sLoop}, 0
  s_cbranch_scc1 {lab}_loop''')
    for k in range(rest):
        s = NK - rest + k
        dm = s + NS < NK
        left = NK - 1 - (s + 1)
        vm = min(NS-2, left)*6 if s + 1 < NK else None
        step(s & 1, dm, s + 1 < NK, vm)
    load_ptr(a, 52, A_X); load_ptr(a, 54, D_OUT)
    lanesum(a, 'v5', [(0,4,11),(4,2,4)], 0)
    a(f'''  s_lshr_b32 s40, s{T.sW}, 1
  s_lshl_b32 s40, s40, 2
  s_add_u32 s40, s40, s{sTt}
  s_lshl_b32 s40, s40, 15
  s_and_b32 s41, s{T.sW}, 1
  s_lshl_b32 s41, s41, 3
  s_add_u32 s41, s41, s{sNt}
  s_lshl_b32 s41, s41, 5
  s_add_u32 s43, s40, s41
  s_waitcnt lgkmcnt(0)''')
    srd(a, 8, 's52', 's53', 2048*1024*2); srd(a, T.sOut, 's54', 's55', 2048*1024*2)
    X0 = 112
    for mt in range(4):
        a(f'  s_add_u32 s{44+mt}, s43, {mt*32768}\n  s_add_u32 s{48+mt}, s{44+mt}, {G}')
    for mt in range(4):
        for p in range(4):
            r = X0 + (mt*4 + p)*8
            a(f'  buffer_load_dwordx4 {vr(r,4)}, v5, s[8:11], s{44+mt} offen offset:{p*64}')
            a(f'  buffer_load_dwordx4 {vr(r+4,4)}, v5, {WS}, s{48+mt} offen offset:{p*64}')
    k = 0
    for mt in range(4):
        for p in range(4):
            r = X0 + (mt*4 + p)*8; U = 16 + 16*(k & 1)
            for h in range(2):
                for u in range(4): a(f'  v_accvgpr_read_b32 v{U+4*h+u}, a{ACC(2*p+h, mt)+u}')
            a(f'  s_waitcnt vmcnt({2*(15-k) + k})')
            for i in range(4):
                a(f'''  v_lshlrev_b32 v{U+8}, 16, v{r+i}
  v_and_b32 v{U+9}, 0xffff0000, v{r+i}
  v_lshlrev_b32 v{U+10}, 16, v{r+4+i}
  v_and_b32 v{U+11}, 0xffff0000, v{r+4+i}
  v_fmac_f32 v{U+8}, v{U+2*i}, v{U+10}
  v_fmac_f32 v{U+9}, v{U+2*i+1}, v{U+11}
  v_cvt_pk_bf16_f32 v{U+12+i}, v{U+8}, v{U+9}''')
            a(f'  buffer_store_dwordx4 {vr(U+12,4)}, v5, s[{T.sOut}:{T.sOut+3}], s{44+mt} offen offset:{p*64}{sc}')
            k += 1
```

```python
import sys
from tasks import *
from chain import *
import chain
NAME = 'recurrent_scan__memory_aug_recurrent_mem_tr__glu_gated_reglu__prompt_kernel'
cfg = dict(mw=1, pf=4, real=0, dbgt=0, par=2, prof=0, wbl2=0, stamp=-1, force=0, chainonly=0, nochain=0)
cfg.update(chain.OPT)
out = sys.argv[1]
for x in sys.argv[2:]:
    k, v = x.split('='); cfg[k] = int(v)
for k in chain.OPT: chain.OPT[k] = cfg[k]
import gemmlib
gemmlib.PF = cfg['pf']
SC = ' sc1'
HDR = open('recurrent_scan__memory_aug_recurrent_mem_tr__glu_gated_reglu__prompt.s.ref').read().split('\n')
a = Asm(); c = C
for l in HDR[:15]: a(l)
LDS_TK = 131072
a(f'; @launch grid=(256,1,1) block=(256,1,1) lds={LDS_TK + 256}')
a('.amdgcn_target "amdgcn-amd-amdhsa--gfx950"')
a(kernel_head(NAME))
sDbg = 90; sXcc = 92; sTk = 93; sGt = 94; sMode = 95; sQ = 96; sTkt = 97; sIdx = 98; sBnd = 99
sStamp = 100
WS = f's[{T.sWS}:{T.sWS+3}]'
BOUND = 100000
def dstamp(word, v=1, neg=False, cond=None):
    if not cfg['dbgt']: return
    l = a.label('L_ds')
    a(cond if cond else f'  s_cmp_eq_u32 s{T.sW if v < 100 else c.sW}, 0')
    a(f"""  s_cbranch_scc0 {l}
  s_memrealtime s[100:101]
  s_waitcnt lgkmcnt(0)""")
    if neg: a('  s_not_b32 s100, s100')
    a(f"""  v_mov_b32 v{v}, {4*word}
  v_mov_b32 v{v+1}, s100
  s_mov_b64 exec, 1
  global_atomic_umax v{v}, v{v+1}, s[{sDbg}:{sDbg+1}] sc1
  s_mov_b64 exec, -1
{l}:""")
a(f'''  s_cmp_ge_u32 s2, 256
  s_cbranch_scc1 L_end
  s_load_dwordx2 s[{sDbg}:{sDbg+1}], s[0:1], {D_DBG}
  v_lshrrev_b32 v1, 6, v0
  v_and_b32 v0, 63, v0
  s_getreg_b32 s{sXcc}, hwreg(HW_REG_XCC_ID)
  v_readfirstlane_b32 s{T.sW}, v1
  s_and_b32 s{sXcc}, s{sXcc}, 7
  s_mov_b32 s{c.sW}, s{T.sW}''')
emit_ws_srd(a)
if cfg['prof']:
    a(f'  s_memrealtime s[{sStamp}:{sStamp+1}]')
dstamp(0, 1, neg=True); dstamp(1, 1)
a(f'''  s_cmp_lg_u32 s{T.sW}, 0
  s_cbranch_scc1 L_tk_w
  s_lshl_b32 s40, s{sXcc}, 2
  s_add_u32 s40, s40, {DBG_XCD}
  v_mov_b32 v250, s40
  v_mov_b32 v251, 1
  v_mov_b32 v252, {DBG_GT}
  s_mov_b64 exec, 1
  global_atomic_add v248, v250, v251, s[{sDbg}:{sDbg+1}] sc0 sc1
  global_atomic_add v249, v252, v251, s[{sDbg}:{sDbg+1}] sc0 sc1
  s_mov_b64 exec, -1
L_tk_w:''')
emit_ln(a, 2, SC)
emit_ring_init(a, 2, SC)
a(f'''  s_cmp_lg_u32 s{T.sW}, 0
  s_cbranch_scc1 L_fl_w
  s_lshl_b32 s40, s2, 6
  s_add_u32 s40, s40, {FLG}
  v_lshlrev_b32 v1, 2, v0
  v_mov_b32 v2, 0
  s_mov_b32 exec_lo, 0xffff
  s_mov_b32 exec_hi, 0
  buffer_store_dword v2, v1, {WS}, s40 offen sc1
  s_mov_b64 exec, 1
  s_waitcnt vmcnt(0)
  v_mov_b32 v1, {LDS_TK}
  ds_write_b64 v1, v[248:249]
  s_waitcnt lgkmcnt(0)''')
a(f'''  s_mov_b64 exec, -1
L_fl_w:
  s_waitcnt vmcnt(0)
  s_barrier
  s_cmp_lg_u32 s{T.sW}, 0
  s_cbranch_scc1 L_ar_w
  v_mov_b32 v4, {DBG_ARR}
  v_mov_b32 v2, 1
  s_mov_b64 exec, 1
  global_atomic_add v4, v2, s[{sDbg}:{sDbg+1}] sc1
  s_mov_b64 exec, -1
L_ar_w:
  v_mov_b32 v1, {LDS_TK}
  ds_read_b64 v[2:3], v1
  s_waitcnt lgkmcnt(0)
  v_readfirstlane_b32 s{sTk}, v2
  v_readfirstlane_b32 s{sGt}, v3
  s_mov_b32 s{sMode}, 0
  s_cmp_ge_u32 s{sXcc}, 4
  s_cbranch_scc1 L_wait
  s_cmp_ge_u32 s{sTk}, 32
  s_cbranch_scc1 L_wait
  s_mov_b32 s{c.sX}, s{sXcc}
  s_mov_b32 s{c.sJ}, s{sTk}
L_setup:
  s_load_dwordx4 s[64:67], s[0:1], {A_MEM0}
  s_load_dwordx4 s[68:71], s[0:1], {A_WK}
  s_load_dwordx2 s[72:73], s[0:1], {A_WO}
  s_mov_b32 s{c.sPar}, {cfg['par'] if cfg['par'] < 2 else 0}
  s_waitcnt lgkmcnt(0)''')
emit_ring_base(a, 50, 52)
srd(a, c.sRG, 's50', 's51', 4*MB)
srd(a, c.sT0, 's66', 's67', 8*MB); srd(a, c.sT0+4, 's68', 's69', 8*MB)
srd(a, c.sT0+8, 's70', 's71', 8*MB); srd(a, c.sT0+12, 's72', 's73', 8*MB)
srd(a, 76, 's64', 's65', 16384)
emit_setup(a)
emit_weights(a)
if cfg['mw']: emit_mall_warm(a, c.sX, c.sJ, c.sW)
def emit_wait_all(p, cand):
    a(f'''{p}:
  s_cmp_lg_u32 s{c.sW}, 0
  s_cbranch_scc1 {p}_w
  v_mov_b32 v17, {DBG_ARR}
  s_mov_b32 s{sBnd}, {4*BOUND}
{p}_p:
  global_load_dword v18, v17, s[{sDbg}:{sDbg+1}] sc1
  s_waitcnt vmcnt(0)
  v_readfirstlane_b32 s40, v18
  s_nop 0
  s_cmp_ge_u32 s40, 256
  s_cbranch_scc1 {p}_ok
  s_sub_u32 s{sBnd}, s{sBnd}, 1
  s_cbranch_scc0 {p}_p
  v_mov_b32 v18, -1
  s_branch {p}_pub
{p}_ok:
  v_mov_b32 v16, {DBG_XCD}
  global_load_dwordx4 v[20:23], v16, s[{sDbg}:{sDbg+1}] sc1
  global_load_dwordx4 v[24:27], v16, s[{sDbg}:{sDbg+1}] offset:16 sc1
  s_waitcnt vmcnt(0)
  v_min_u32 v20, v20, v21
  v_min_u32 v22, v22, v23
  v_min_u32 v24, v24, v25
  v_min_u32 v26, v26, v27
  v_min_u32 v20, v20, v22
  v_min_u32 v24, v24, v26
  v_min_u32 v18, v20, v24
{p}_pub:
  v_mov_b32 v16, {LDS_TK}
  ds_write_b32 v16, v18 offset:8
  s_waitcnt lgkmcnt(0)
{p}_w:
  s_barrier
  v_mov_b32 v16, {LDS_TK}
  ds_read_b32 v17, v16 offset:8
  s_waitcnt lgkmcnt(0)
  v_readfirstlane_b32 s40, v17
  s_nop 0
  s_cmp_eq_u32 s40, -1
  s_cbranch_scc1 L_fail
  s_cmp_ge_u32 s40, {32 if not cfg['force'] else 33}
  s_cbranch_scc0 L_glob''')
    dstamp(2, 160)
    if cand: a('  s_branch L_chain_l')
    else:
        a(f'''  s_sub_u32 s{sQ}, s{sXcc}, 4
  s_and_b32 s{sQ}, s{sQ}, 3
  s_branch L_tasks''')
a(f'''  s_cmp_eq_u32 s{sMode}, 2
  s_cbranch_scc1 L_chain_g''')
emit_wait_all('L_waitc', True)
emit_wait_all('L_wait', False)
a(f'''L_glob:
  s_cmp_ge_u32 s{sGt}, 128
  s_cbranch_scc1 L_glob_t
  s_lshr_b32 s{c.sX}, s{sGt}, 5
  s_and_b32 s{c.sJ}, s{sGt}, 31
  s_mov_b32 s{sMode}, 2
  s_branch L_setup
L_glob_t:
  s_sub_u32 s{sQ}, s{sGt}, 128
  s_lshr_b32 s{sQ}, s{sQ}, 5
  s_and_b32 s{sQ}, s{sQ}, 3
  s_branch L_tasks''')

sPub = 48; sFo = 49
def after_a(a, pfx):
    if cfg['dbgt']:
        for wd, stp in ((4, 8), (5, 32)):
            l = a.label('L_cs')
            a(f'  s_cmp_eq_u32 s{c.sS}, {stp}\n  s_cbranch_scc0 {l}')
            dstamp(wd, 160, cond=f'  s_cmp_lg_u32 s{sPub}, 0')
            a(f'{l}:')
    a(f'''  s_cmp_eq_u32 s{sPub}, 0
  s_cbranch_scc1 {pfx}_npub
  s_sub_u32 s{c.sT}, s{c.sS}, 1
  s_max_i32 s{c.sT}, s{c.sT}, 0
  v_mov_b32 v254, s{c.sT}
  s_mov_b32 s{sFo}, {FLG + F_PROG}
  buffer_store_dword v254, off, s[{c.sWS}:{c.sWS+3}], s{sFo} sc1
{pfx}_npub:
  s_cmp_lg_u32 s{c.sW}, 3
  s_cbranch_scc1 {pfx}_nkv
  s_and_b32 s{c.sT}, s{c.sS}, 7
  s_cmp_lg_u32 s{c.sT}, 5
  s_cbranch_scc1 {pfx}_nkv
  s_add_u32 s{c.sT}, s{c.sS}, 3
  s_lshr_b32 s{c.sT}, s{c.sT}, 3
  s_min_u32 s{c.sT}, s{c.sT}, 7
  s_lshl_b32 s{c.sT}, s{c.sT}, 7
  s_add_u32 s{sFo}, s{c.sT}, {FLG + F_KV}
  buffer_load_dword v253, off, s[{c.sWS}:{c.sWS+3}], s{sFo} sc1
{pfx}_nkv:''')
def pre_red1(a, pfx, fail):
    nk = 0 if cfg['nokv'] else 8
    a(f'''  s_cmp_lg_u32 s{c.sW}, 3
  s_cbranch_scc1 {pfx}_kvok
  s_and_b32 s{c.sT}, s{c.sS}, 7
  s_cmp_lg_u32 s{c.sT}, 5
  s_cbranch_scc1 {pfx}_kvok
  s_waitcnt vmcnt({nk})
  s_mov_b32 s{c.sBound}, {BOUND}
{pfx}_kvp:
  v_readfirstlane_b32 s{c.sT}, v253
  s_nop 0
  s_cmp_ge_u32 s{c.sT}, 32
  s_cbranch_scc1 {pfx}_kvok
  buffer_load_dword v253, off, s[{c.sWS}:{c.sWS+3}], s{sFo} sc1
  s_waitcnt vmcnt(0)
  s_sub_u32 s{c.sBound}, s{c.sBound}, 1
  s_cbranch_scc0 {pfx}_kvp
  s_branch {fail}
{pfx}_kvok:''')
if not cfg['chainonly']:
    chain.HOOK['after_a'] = after_a; chain.HOOK['pre_red1'] = pre_red1
BOUND2 = 200000
def stamp(a, k):
    l = a.label('L_st')
    tm = 's_memrealtime' if cfg['real'] else 's_memtime'
    ex = {1: 60, 4: 61, 7: 62}.get(k)
    exs = f'  s_sub_u32 s{ex}, {BOUND2}, s{c.sBound}\n' if ex else ''
    a(f'  s_cmp_eq_u32 s{c.sS}, {cfg["stamp"]}\n  s_cbranch_scc0 {l}\n  {tm} s[{64+2*k}:{65+2*k}]\n{exs}{l}:')
stf = stamp if cfg['stamp'] >= 0 else None
def chain_entry(mode, pfx):
    a(f'''  s_mov_b32 s{sPub}, 0
  s_add_u32 s50, s{c.sX}, s{c.sJ}
  s_cmp_lg_u32 s50, 0
  s_cbranch_scc1 {pfx}_np
  s_cmp_eq_u32 s{c.sW}, 2
  s_cselect_b32 s{sPub}, 1, 0
{pfx}_np:''')
    if cfg['par'] == 2:
        a(f'''  s_add_u32 s50, s{c.sX}, s{c.sJ}
  s_add_u32 s50, s50, s{c.sW}
  s_cmp_lg_u32 s50, 0
  s_cbranch_scc1 {pfx}_npr
  s_mov_b64 exec, 1
  s_mov_b32 s56, 0
  s_mov_b32 s57, 0
  s_waitcnt vmcnt(0)''')
        for i in range(4):
            for par in range(2):
                a(f'''  s_mov_b32 s51, {RC + 3*262144 + (3+4*i)*16384 + par*8192}
  s_memtime s[52:53]
  s_waitcnt lgkmcnt(0)
  buffer_store_dword v{c.vSent}, off, s[{c.sRG}:{c.sRG+3}], s51 sc1
  s_waitcnt vmcnt(0)
  s_memtime s[54:55]
  s_waitcnt lgkmcnt(0)
  s_sub_u32 s54, s54, s52
  s_add_u32 s{56+par}, s{56+par}, s54''')
        a(f'''  s_cmp_lt_u32 s57, s56
  s_cselect_b32 s56, 2, 1
  v_mov_b32 v16, {DBG_PAR}
  v_mov_b32 v17, s56
  global_store_dword v16, v17, s[{sDbg}:{sDbg+1}] sc1
  s_mov_b64 exec, -1
{pfx}_npr:
  v_mov_b32 v16, {DBG_PAR}
  s_mov_b32 s{c.sBound}, {BOUND}
{pfx}_pp:
  global_load_dword v17, v16, s[{sDbg}:{sDbg+1}] sc1
  s_waitcnt vmcnt(0)
  v_readfirstlane_b32 s50, v17
  s_nop 0
  s_cmp_lg_u32 s50, 0
  s_cbranch_scc1 {pfx}_ppok
  s_sub_u32 s{c.sBound}, s{c.sBound}, 1
  s_cbranch_scc0 {pfx}_pp
  s_branch L_fail
{pfx}_ppok:
  s_sub_u32 s50, s50, 1
  s_and_b32 s50, s50, 1
  s_lshl_b32 s50, s50, 13
  v_add_u32 v{c.vCst}, s50, v{c.vCst}
  v_add_u32 v{c.vCld}, s50, v{c.vCld}''')
    if not cfg['chainonly']:
        a(f'''  s_mov_b32 s{sFo}, {FLG + F_KV}
  s_mov_b32 s{c.sBound}, {BOUND}
{pfx}_kv0:
  buffer_load_dword v253, off, s[{c.sWS}:{c.sWS+3}], s{sFo} sc1
  s_waitcnt vmcnt(0)
  v_readfirstlane_b32 s50, v253
  s_nop 0
  s_cmp_ge_u32 s50, 32
  s_cbranch_scc1 {pfx}_kv0ok
  s_sub_u32 s{c.sBound}, s{c.sBound}, 1
  s_cbranch_scc0 {pfx}_kv0
  s_branch L_fail
{pfx}_kv0ok:''')
    if cfg['prof']:
        a('  s_memrealtime s[80:81]\n  s_memtime s[84:85]\n  s_waitcnt lgkmcnt(0)')
    dstamp(3, 160)
    emit_start(a, mode, 76)
    emit_loop(a, mode, pfx, 'L_fail', 'L_chain_done', stamp=stf)
a('L_chain_l:')
if cfg['nochain']:
    a(f'''  s_mov_b32 s50, {FLG + F_PROG}
  v_mov_b32 v16, 64
  buffer_store_dword v16, off, s[4:7], s50 sc1
  s_waitcnt vmcnt(0)
  s_branch L_end''')
chain_entry('L', 'LL')
a('L_chain_g:')
chain_entry('G', 'LG')
a(f'''L_chain_done:
  s_waitcnt vmcnt(0)
  s_barrier''')
dstamp(6, 160)
if cfg['prof']:
    a(f'''  s_memrealtime s[82:83]
  s_memtime s[86:87]
  s_waitcnt lgkmcnt(0)
  s_lshl_b32 s50, s{c.sX}, 5
  s_add_u32 s50, s50, s{c.sJ}
  s_lshl_b32 s50, s50, 2
  s_add_u32 s50, s50, s{c.sW}
  s_lshl_b32 s50, s50, 6
  s_add_u32 s50, s50, {200*MB}
  v_mov_b32 v1, s50
  s_sub_u32 s86, s86, s84''')
    for k in range(8): a(f'  v_mov_b32 v{2+k}, s{64+2*k}')
    a(f'''  v_mov_b32 v10, s86
  v_mov_b32 v11, s{sStamp}
  v_mov_b32 v12, s80
  v_mov_b32 v13, s82
  s_mov_b64 exec, 1
  buffer_store_dwordx4 v[2:5], v1, s[{c.sWS}:{c.sWS+3}], 0 offen
  buffer_store_dwordx4 v[6:9], v1, s[{c.sWS}:{c.sWS+3}], 0 offen offset:16
  buffer_store_dwordx4 v[10:13], v1, s[{c.sWS}:{c.sWS+3}], 0 offen offset:32
  v_mov_b32 v14, s60
  v_mov_b32 v15, s61
  v_mov_b32 v16, s62
  v_mov_b32 v17, 0
  buffer_store_dwordx4 v[14:17], v1, s[{c.sWS}:{c.sWS+3}], 0 offen offset:48
  s_mov_b64 exec, -1''')
a(f'''  s_cmp_lg_u32 s{c.sW}, 0
  s_cbranch_scc1 L_end
  s_mov_b32 s40, {FLG + F_CDONE}
  v_mov_b32 v1, s40
  v_mov_b32 v2, 1
  s_mov_b64 exec, 1
  buffer_atomic_add v2, v1, s[{c.sWS}:{c.sWS+3}], 0 offen sc0 sc1
  s_waitcnt vmcnt(0)
  v_readfirstlane_b32 s40, v2
  s_nop 0
  s_cmp_eq_u32 s40, 127
  s_cbranch_scc0 L_end
  s_mov_b32 s40, {FLG + F_PROG}
  v_mov_b32 v2, 64
  buffer_store_dword v2, off, s[{c.sWS}:{c.sWS+3}], s40 sc1
  s_waitcnt vmcnt(0)
  s_branch L_end''')

def wait_flag(off_const, sreg_idx, target, shift=7):
    l = a.label('L_wf')
    if sreg_idx is None: a(f'  s_mov_b32 s41, {FLG + off_const}')
    else: a(f'  s_lshl_b32 s41, s{sreg_idx}, {shift}\n  s_add_u32 s41, s41, {FLG + off_const}')
    a(f'''  s_cmp_lg_u32 s{T.sW}, 0
  s_cbranch_scc1 {l}_w
  s_mov_b32 s{sBnd}, {BOUND}
{l}_p:
  buffer_load_dword v1, off, {WS}, s41 sc1
  s_waitcnt vmcnt(0)
  v_readfirstlane_b32 s42, v1
  s_nop 0
  s_cmp_ge_u32 s42, {target}
  s_cbranch_scc1 {l}_w
  s_sub_u32 s{sBnd}, s{sBnd}, 1
  s_cbranch_scc0 {l}_p
  v_mov_b32 v1, {DBG_FAIL + 4}
  v_mov_b32 v2, 1
  s_mov_b64 exec, 1
  global_atomic_add v1, v2, s[{sDbg}:{sDbg+1}] sc1
  s_mov_b64 exec, -1
{l}_w:''')
sSig = 35
sBase = 32
a('L_tasks:')
a(f'  s_mov_b32 s{T.sW}, s{c.sW}')
a(f'  s_mov_b32 s{sSig}, -1')
if cfg['dbgt']: a('  s_mov_b32 s70, 15')
a('L_next:')
a(f'''  s_waitcnt vmcnt(0)
  s_barrier
  s_cmp_lg_u32 s{T.sW}, 0
  s_cbranch_scc1 L_next_w
  s_mov_b64 exec, 1''')
if cfg['prof']:
    a(f'''  s_cmp_eq_u32 s{sSig}, -1
  s_cbranch_scc1 L_nprof
  s_memrealtime s[82:83]
  s_memtime s[74:75]
  s_lshl_b32 s40, s{sQ}, 9
  s_add_u32 s40, s40, s{sTkt}
  s_lshl_b32 s40, s40, 5
  s_add_u32 s40, s40, {201*MB}
  s_waitcnt lgkmcnt(0)
  s_sub_u32 s41, s88, s86
  v_mov_b32 v8, s41
  s_sub_u32 s41, s74, s88
  v_mov_b32 v9, s41
  s_sub_u32 s41, s74, s86
  v_mov_b32 v10, s41
  v_mov_b32 v11, 0
  s_add_u32 s41, s40, 16
  buffer_store_dwordx4 v[8:11], off, {WS}, s41
  v_mov_b32 v4, s80
  v_mov_b32 v5, s84
  v_mov_b32 v6, s82
  s_lshl_b32 s41, s{sXcc}, 8
  s_add_u32 s41, s41, s{sTk}
  v_mov_b32 v7, s41
  buffer_store_dwordx4 v[4:7], off, {WS}, s40
L_nprof:''')
if cfg['dbgt']:
    a(f'''  s_memrealtime s[100:101]
  s_waitcnt lgkmcnt(0)
  s_lshl_b32 s40, s70, 2
  v_mov_b32 v1, s40
  v_mov_b32 v2, s100
  global_atomic_umax v1, v2, s[{sDbg}:{sDbg+1}] sc1''')
a(f'''  s_cmp_eq_u32 s{sSig}, -1
  s_cbranch_scc1 L_nosig''')
if cfg['wbl2']: a('  buffer_wbl2 sc1\n  s_waitcnt vmcnt(0)')
a(f'''  s_add_u32 s40, s{sSig}, {FLG}
  v_mov_b32 v1, s40
  v_mov_b32 v2, 1
  buffer_atomic_add v2, v1, {WS}, 0 offen sc1
L_nosig:
  s_lshl_b32 s40, s{sQ}, 5
  s_add_u32 s40, s40, {DBG_QUEUE}
  v_mov_b32 v1, s40
  v_mov_b32 v2, 1
  global_atomic_add v3, v1, v2, s[{sDbg}:{sDbg+1}] sc0 sc1
  s_waitcnt vmcnt(0)
  v_mov_b32 v1, {LDS_TK}
  ds_write_b32 v1, v3 offset:16
  s_waitcnt lgkmcnt(0)
  s_mov_b64 exec, -1
L_next_w:
  s_barrier
  v_mov_b32 v1, {LDS_TK}
  ds_read_b32 v3, v1 offset:16
  s_waitcnt lgkmcnt(0)
  v_readfirstlane_b32 s{sTkt}, v3''')
if cfg['prof']: a('  s_memrealtime s[80:81]\n  s_waitcnt lgkmcnt(0)')
ranges = []
ranges.append((32, 'KV0')); ranges.append((28, 'GU0')); ranges.append((4, 'WOF')); ranges.append((4, 'D0'))
ranges.append((28, 'GU4')); ranges.append((4, 'D4')); ranges.append((32, 'KV4')); ranges.append((32, 'Q'))
ranges.append((31*8, 'AW')); ranges.append((4, 'A31')); ranges.append((16, 'W31'))
start = 0
DW = dict(KV0=8, GU0=9, WOF=9, D0=10, GU4=11, D4=12, KV4=13, Q=14, AW=7, A31=7, W31=7)
for cnt, lab in ranges:
    if cfg['dbgt']: a(f'  s_mov_b32 s70, {DW[lab]}')
    a(f'''  s_sub_u32 s{sIdx}, s{sTkt}, {start}
  s_cmp_lt_u32 s{sTkt}, {start + cnt}
  s_cbranch_scc1 T_{lab}''')
    start += cnt
a('  s_branch L_end')
print('tasks per queue', start)
def mark():
    if cfg['prof']: a('  s_memrealtime s[84:85]\n  s_memtime s[86:87]\n  s_memtime s[88:89]\n  s_waitcnt lgkmcnt(0)')
def mark2():
    if cfg['prof']: a('  s_memtime s[88:89]\n  s_waitcnt lgkmcnt(0)')
a(f'''T_KV0:
  s_and_b32 s{T.sM}, s{sIdx}, 3
  s_lshr_b32 s40, s{sIdx}, 2
  s_branch T_KV
T_KV4:
  s_lshr_b32 s{T.sM}, s{sIdx}, 3
  s_add_u32 s{T.sM}, s{T.sM}, 4
  s_and_b32 s40, s{sIdx}, 7
T_KV:
  s_and_b32 s41, s40, 3
  s_lshl_b32 s{T.sN}, s{sQ}, 2
  s_add_u32 s{T.sN}, s{T.sN}, s41
  s_lshl_b32 s{sSig}, s{T.sM}, 7
  s_add_u32 s{sSig}, s{sSig}, {F_KV}
  s_cmp_ge_u32 s40, 4
  s_cbranch_scc1 T_V''')
emit_gemm_params(a, TY_K)
a(f'  s_mov_b32 s{sBase}, {K}\n  s_mov_b32 s{T.sTy}, 0\n  s_branch G_n')
a(f'''T_Q:
  s_lshr_b32 s{T.sM}, s{sIdx}, 2
  s_and_b32 s41, s{sIdx}, 3
  s_lshl_b32 s{T.sN}, s{sQ}, 2
  s_add_u32 s{T.sN}, s{T.sN}, s41
  s_lshl_b32 s{sSig}, s{T.sM}, 7
  s_add_u32 s{sSig}, s{sSig}, {F_Q}''')
emit_gemm_params(a, TY_Q)
a(f'  s_mov_b32 s{sBase}, {Q}\n  s_mov_b32 s{T.sTy}, 0\n  s_branch G_n')
a(f'''T_GU0:
  s_and_b32 s{T.sM}, s{sIdx}, 3
  s_branch T_GU
T_GU4:
  s_and_b32 s{T.sM}, s{sIdx}, 3
  s_add_u32 s{T.sM}, s{T.sM}, 4
T_GU:
  s_lshr_b32 s41, s{sIdx}, 2
  s_mul_i32 s{T.sN}, s{sQ}, 7
  s_add_u32 s{T.sN}, s{T.sN}, s41
  s_lshl_b32 s{sSig}, s{T.sM}, 7
  s_add_u32 s{sSig}, s{sSig}, {F_GU}''')
emit_gemm_params(a, TY_GU)
a(f'  s_mov_b32 s{T.sTy}, 2\n  s_branch G_n')
a(f'''T_D0:
  s_mov_b32 s{T.sM}, s{sIdx}
  s_branch T_D
T_D4:
  s_add_u32 s{T.sM}, s{sIdx}, 4
T_D:
  s_mov_b32 s{T.sN}, s{sQ}
  s_lshl_b32 s{sSig}, s{T.sM}, 7
  s_add_u32 s{sSig}, s{sSig}, {F_D}''')
wait_flag(F_GU, T.sM, 28)
a('  s_barrier')
emit_gemm_params(a, TY_D)
a(f'  s_mov_b32 s{T.sTy}, 3')
a('G_n:'); mark()
emit_gemm_main(a, False, 'G_n'); mark2()
a(f'''  s_cmp_eq_u32 s{T.sTy}, 2
  s_cbranch_scc1 G_egu
  s_cmp_eq_u32 s{T.sTy}, 3
  s_cbranch_scc1 G_ed''')
emit_epi_kq(a, f's{sBase}', SC); a('  s_branch L_next')
a('G_egu:'); emit_epi_gu(a, SC); a('  s_branch L_next')
a('G_ed:'); emit_epi_d(a, SC); a('  s_branch L_next')
a('T_V:'); emit_gemm_params(a, TY_V); mark(); emit_gemm_main(a, True, 'G_s'); mark2(); emit_epi_v(a, SC); a('  s_branch L_next')
a(f'''T_WOF:
  s_mov_b32 s{sSig}, {F_WOF}
  s_lshl_b32 s{T.sM}, s{sQ}, 5
  s_lshl_b32 s40, s{sIdx}, 3
  s_add_u32 s{T.sM}, s{T.sM}, s40
  s_add_u32 s{T.sN}, s{T.sM}, 8''')
mark()
a('T_WOF_l:')
emit_wo_repack(a, T.sM, SC)
a(f'''  s_add_u32 s{T.sM}, s{T.sM}, 1
  s_cmp_lt_u32 s{T.sM}, s{T.sN}
  s_cbranch_scc1 T_WOF_l
  s_branch L_next''')
a(f'''T_AW:
  s_lshr_b32 s{T.sM}, s{sIdx}, 3        ; block c
  s_and_b32 s40, s{sIdx}, 7
  s_cmp_ge_u32 s40, 4
  s_cbranch_scc1 T_W
  s_branch T_A
T_A31:
  s_mov_b32 s{T.sM}, 31
  s_mov_b32 s40, s{sIdx}
T_A:
  s_lshl_b32 s{sSig}, s{T.sM}, 7
  s_add_u32 s{sSig}, s{sSig}, {F_O}
  s_lshr_b32 s{T.sN}, s40, 1
  s_lshl_b32 s41, s{sQ}, 1
  s_add_u32 s{T.sN}, s{T.sN}, s41
  s_lshl_b32 s{T.sM}, s{T.sM}, 1
  s_and_b32 s40, s40, 1
  s_add_u32 s{T.sM}, s{T.sM}, s40       ; segment
  s_lshr_b32 s{T.sTy}, s{T.sM}, 3''')
wait_flag(F_Q, T.sTy, 16)
a(f'  s_add_u32 s{T.sTy}, s{T.sM}, 1')
l = a.label('L_wp')
a(f'''  s_mov_b32 s41, {FLG + F_PROG}
  s_cmp_lg_u32 s{T.sW}, 0
  s_cbranch_scc1 {l}_w
  s_mov_b32 s{sBnd}, {BOUND}
{l}_p:
  buffer_load_dword v1, off, {WS}, s41 sc1
  s_waitcnt vmcnt(0)
  v_readfirstlane_b32 s42, v1
  s_nop 0
  s_cmp_ge_u32 s42, s{T.sTy}
  s_cbranch_scc1 {l}_w
  s_sub_u32 s{sBnd}, s{sBnd}, 1
  s_cbranch_scc0 {l}_p
  v_mov_b32 v1, {DBG_FAIL + 8}
  v_mov_b32 v2, 1
  s_mov_b64 exec, 1
  global_atomic_add v1, v2, s[{sDbg}:{sDbg+1}] sc1
  s_mov_b64 exec, -1
{l}_w:
  s_barrier''')
mark()
emit_attn(a, T.sM, T.sN, SC)
a('  s_branch L_next')
def wo_waits(sBlk):
    wait_flag(F_WOF, None, 16)
    a(f'  s_lshr_b32 s{T.sTy}, s{sBlk}, 2')
    wait_flag(F_D, T.sTy, 4)
    wait_flag(F_O, sBlk, 16)
    a('  s_barrier')
a(f'''T_W:
  s_mov_b32 s{sSig}, {F_CDONE + 128}
  s_and_b32 s40, s40, 3
  s_lshl_b32 s{T.sN}, s{sQ}, 2
  s_add_u32 s{T.sN}, s{T.sN}, s40
  s_lshl_b32 s{T.sN}, s{T.sN}, 2''')
wo_waits(T.sM)
a(f'  s_lshl_b32 s{T.sM}, s{T.sM}, 2')
mark()
emit_wo_gemm(a, T.sM, T.sN, 4, 4)
a('  s_branch L_next')
a(f'''T_W31:
  s_mov_b32 s{sSig}, {F_CDONE + 128}
  s_mov_b32 s{T.sM}, 31''')
wo_waits(T.sM)
a(f'''  s_lshr_b32 s40, s{sIdx}, 3
  s_lshl_b32 s40, s40, 1
  s_add_u32 s{T.sM}, s40, 124
  s_and_b32 s40, s{sIdx}, 7
  s_lshl_b32 s{T.sN}, s{sQ}, 3
  s_add_u32 s{T.sN}, s{T.sN}, s40
  s_lshl_b32 s{T.sN}, s{T.sN}, 1''')
mark()
emit_wo_gemm(a, T.sM, T.sN, 2, 2, depth=8)
a('  s_branch L_next')
a(f'''L_fail:
  v_mov_b32 v1, {DBG_FAIL}
  v_mov_b32 v2, 1
  s_mov_b64 exec, 1
  global_atomic_add v1, v2, s[{sDbg}:{sDbg+1}] sc1
  s_waitcnt vmcnt(0)
L_end:
  s_endpgm''')
a(kernel_desc(NAME, 512, accum=256))
open(out, 'w').write(a.text())
check_local(out, NAME)
```

```python
def build_leaves(bulk, nbig, lag, dper, nfine=1):
    PER = dict(KV=8, Q=4, GU=7)
    L = []
    nsmall = (32 - nfine - 2*nbig)*4
    WL = [(i, 1, 4*i + 4) for i in range(nbig)]
    WL += [(nbig + 4*k, 4, 2*(2*nbig + k) + 2) for k in range(32 - nfine - 2*nbig)]
    WL += [(nbig + nsmall + 16*k, 16, 2*(32 - nfine + k) + 2) for k in range(nfine)]
    st = dict(a=0, w=0)
    def emit_a(upto):
        upto = min(64, upto)
        if upto > st['a']:
            L.append(('A', 2*st['a'], 0, 2*(upto - st['a']))); st['a'] = upto
    def emit_w(n):
        for _ in range(n):
            if st['w'] >= len(WL): return
            i0, cnt, sneed = WL[st['w']]; st['w'] += 1
            emit_a(sneed + lag)
            L.append(('W', i0, 0, cnt))
    for e in bulk:
        ty = e[0]
        if ty in PER: L.append((ty, e[1], e[2], PER[ty] << e[2]))
        elif ty == 'WOF': L.append(('WOF', 0, 0, 4))
        elif ty == 'D': L.append(('D', e[1]*dper, 0, e[2]*dper))
        elif ty == 'A': emit_a(e[1])
        elif ty == 'W': emit_w(e[1])
    emit_w(len(WL))
    return L
```

```python
import sys
from tasks import *
from chain import *
import chain
NAME = 'recurrent_scan__memory_aug_recurrent_mem_tr__glu_gated_reglu__prompt_kernel'
cfg = dict(mw=1, pf=4, nbig=12, dnj=8, real=0, dbgt=0, par=2, prof=0, wbl2=0, stamp=-1, force=0, chainonly=0, nochain=0)
cfg.update(chain.OPT)
out = sys.argv[1]
cfg['bulk'] = "[('KV',0,2),('GU',0,2),('WOF',0,0),('D',0,4),('GU',4,2),('D',4,4),('KV',4,0),('KV',5,0),('KV',6,0),('KV',7,0),('Q',0,0),('Q',1,0),('Q',2,0),('Q',3,0),('Q',4,0),('Q',5,0),('Q',6,0),('Q',7,0)]"
cfg['lag'] = 4; cfg['nfine'] = 1
for x in sys.argv[2:]:
    k, v = x.split('=', 1); cfg[k] = v if k == 'bulk' else int(v)
for k in chain.OPT: chain.OPT[k] = cfg[k]
import gemmlib
gemmlib.PF = cfg['pf']
SC = ' sc1'
HDR = open('recurrent_scan__memory_aug_recurrent_mem_tr__glu_gated_reglu__prompt.s.ref').read().split('\n')
a = Asm(); c = C
for l in HDR[:15]: a(l)
LDS_TK = 131072
a(f'; @launch grid=(256,1,1) block=(256,1,1) lds={LDS_TK + 256}')
a('.amdgcn_target "amdgcn-amd-amdhsa--gfx950"')
a(kernel_head(NAME))
sDbg = 90; sXcc = 92; sTk = 93; sGt = 94; sMode = 95; sQ = 96; sTkt = 97; sIdx = 98; sBnd = 99
sStamp = 100
WS = f's[{T.sWS}:{T.sWS+3}]'
BOUND = 100000
def dstamp(word, v=1, neg=False, cond=None):
    if not cfg['dbgt']: return
    l = a.label('L_ds')
    a(cond if cond else f'  s_cmp_eq_u32 s{T.sW if v < 100 else c.sW}, 0')
    a(f"""  s_cbranch_scc0 {l}
  s_memrealtime s[100:101]
  s_waitcnt lgkmcnt(0)""")
    if neg: a('  s_not_b32 s100, s100')
    a(f"""  v_mov_b32 v{v}, {4*word}
  v_mov_b32 v{v+1}, s100
  s_mov_b64 exec, 1
  global_atomic_umax v{v}, v{v+1}, s[{sDbg}:{sDbg+1}] sc1
  s_mov_b64 exec, -1
{l}:""")
a(f'''  s_cmp_ge_u32 s2, 256
  s_cbranch_scc1 L_end
  s_load_dwordx2 s[{sDbg}:{sDbg+1}], s[0:1], {D_DBG}
  v_lshrrev_b32 v1, 6, v0
  v_and_b32 v0, 63, v0
  s_getreg_b32 s{sXcc}, hwreg(HW_REG_XCC_ID)
  v_readfirstlane_b32 s{T.sW}, v1
  s_and_b32 s{sXcc}, s{sXcc}, 7
  s_mov_b32 s{c.sW}, s{T.sW}''')
emit_ws_srd(a)
if cfg['prof']:
    a(f'  s_memrealtime s[{sStamp}:{sStamp+1}]')
dstamp(0, 1, neg=True); dstamp(1, 1)
a(f'''  s_cmp_lg_u32 s{T.sW}, 0
  s_cbranch_scc1 L_tk_w
  s_lshl_b32 s40, s{sXcc}, 2
  s_add_u32 s40, s40, {DBG_XCD}
  v_mov_b32 v250, s40
  v_mov_b32 v251, 1
  v_mov_b32 v252, {DBG_GT}
  s_mov_b64 exec, 1
  global_atomic_add v248, v250, v251, s[{sDbg}:{sDbg+1}] sc0 sc1
  global_atomic_add v249, v252, v251, s[{sDbg}:{sDbg+1}] sc0 sc1
  s_mov_b64 exec, -1
L_tk_w:''')
emit_ln(a, 2, SC)
emit_ring_init(a, 2, SC)
a(f'''  s_cmp_lg_u32 s{T.sW}, 0
  s_cbranch_scc1 L_fl_w
  s_lshl_b32 s40, s2, 6
  s_add_u32 s40, s40, {FLG}
  v_lshlrev_b32 v1, 2, v0
  v_mov_b32 v2, 0
  s_mov_b32 exec_lo, 0xffff
  s_mov_b32 exec_hi, 0
  buffer_store_dword v2, v1, {WS}, s40 offen sc1
  s_mov_b64 exec, 1
  s_waitcnt vmcnt(0)
  v_mov_b32 v1, {LDS_TK}
  ds_write_b64 v1, v[248:249]
  s_waitcnt lgkmcnt(0)''')
a(f'''  s_mov_b64 exec, -1
L_fl_w:
  s_waitcnt vmcnt(0)
  s_barrier
  s_cmp_lg_u32 s{T.sW}, 0
  s_cbranch_scc1 L_ar_w
  v_mov_b32 v4, {DBG_ARR}
  v_mov_b32 v2, 1
  s_mov_b64 exec, 1
  global_atomic_add v4, v2, s[{sDbg}:{sDbg+1}] sc1
  s_mov_b64 exec, -1
L_ar_w:
  v_mov_b32 v1, {LDS_TK}
  ds_read_b64 v[2:3], v1
  s_waitcnt lgkmcnt(0)
  v_readfirstlane_b32 s{sTk}, v2
  v_readfirstlane_b32 s{sGt}, v3
  s_mov_b32 s{sMode}, 0
  s_cmp_ge_u32 s{sXcc}, 4
  s_cbranch_scc1 L_wait
  s_cmp_ge_u32 s{sTk}, 32
  s_cbranch_scc1 L_wait
  s_mov_b32 s{c.sX}, s{sXcc}
  s_mov_b32 s{c.sJ}, s{sTk}
L_setup:
  s_load_dwordx4 s[64:67], s[0:1], {A_MEM0}
  s_load_dwordx4 s[68:71], s[0:1], {A_WK}
  s_load_dwordx2 s[72:73], s[0:1], {A_WO}
  s_mov_b32 s{c.sPar}, {cfg['par'] if cfg['par'] < 2 else 0}
  s_waitcnt lgkmcnt(0)''')
emit_ring_base(a, 50, 52)
srd(a, c.sRG, 's50', 's51', 4*MB)
srd(a, c.sT0, 's66', 's67', 8*MB); srd(a, c.sT0+4, 's68', 's69', 8*MB)
srd(a, c.sT0+8, 's70', 's71', 8*MB); srd(a, c.sT0+12, 's72', 's73', 8*MB)
srd(a, 76, 's64', 's65', 16384)
emit_setup(a)
emit_weights(a)
if cfg['mw']: emit_mall_warm(a, c.sX, c.sJ, c.sW)
def emit_wait_all(p, cand):
    a(f'''{p}:
  s_cmp_lg_u32 s{c.sW}, 0
  s_cbranch_scc1 {p}_w
  v_mov_b32 v17, {DBG_ARR}
  s_mov_b32 s{sBnd}, {4*BOUND}
{p}_p:
  global_load_dword v18, v17, s[{sDbg}:{sDbg+1}] sc1
  s_waitcnt vmcnt(0)
  v_readfirstlane_b32 s40, v18
  s_nop 0
  s_cmp_ge_u32 s40, 256
  s_cbranch_scc1 {p}_ok
  s_sub_u32 s{sBnd}, s{sBnd}, 1
  s_cbranch_scc0 {p}_p
  v_mov_b32 v18, -1
  s_branch {p}_pub
{p}_ok:
  v_mov_b32 v16, {DBG_XCD}
  global_load_dwordx4 v[20:23], v16, s[{sDbg}:{sDbg+1}] sc1
  global_load_dwordx4 v[24:27], v16, s[{sDbg}:{sDbg+1}] offset:16 sc1
  s_waitcnt vmcnt(0)
  v_min_u32 v20, v20, v21
  v_min_u32 v22, v22, v23
  v_min_u32 v24, v24, v25
  v_min_u32 v26, v26, v27
  v_min_u32 v20, v20, v22
  v_min_u32 v24, v24, v26
  v_min_u32 v18, v20, v24
{p}_pub:
  v_mov_b32 v16, {LDS_TK}
  ds_write_b32 v16, v18 offset:8
  s_waitcnt lgkmcnt(0)
{p}_w:
  s_barrier
  v_mov_b32 v16, {LDS_TK}
  ds_read_b32 v17, v16 offset:8
  s_waitcnt lgkmcnt(0)
  v_readfirstlane_b32 s40, v17
  s_nop 0
  s_cmp_eq_u32 s40, -1
  s_cbranch_scc1 L_fail
  s_cmp_ge_u32 s40, {32 if not cfg['force'] else 33}
  s_cbranch_scc0 L_glob''')
    dstamp(2, 160)
    if cand: a('  s_branch L_chain_l')
    else:
        a(f'''  s_sub_u32 s{sQ}, s{sXcc}, 4
  s_and_b32 s{sQ}, s{sQ}, 3
  s_branch L_tasks''')
a(f'''  s_cmp_eq_u32 s{sMode}, 2
  s_cbranch_scc1 L_chain_g''')
emit_wait_all('L_waitc', True)
emit_wait_all('L_wait', False)
a(f'''L_glob:
  s_cmp_ge_u32 s{sGt}, 128
  s_cbranch_scc1 L_glob_t
  s_lshr_b32 s{c.sX}, s{sGt}, 5
  s_and_b32 s{c.sJ}, s{sGt}, 31
  s_mov_b32 s{sMode}, 2
  s_branch L_setup
L_glob_t:
  s_sub_u32 s{sQ}, s{sGt}, 128
  s_lshr_b32 s{sQ}, s{sQ}, 5
  s_and_b32 s{sQ}, s{sQ}, 3
  s_branch L_tasks''')

sPub = 48; sFo = 49
def after_a(a, pfx):
    if cfg['dbgt']:
        for wd, stp in ((4, 8), (5, 32)):
            l = a.label('L_cs')
            a(f'  s_cmp_eq_u32 s{c.sS}, {stp}\n  s_cbranch_scc0 {l}')
            dstamp(wd, 160, cond=f'  s_cmp_lg_u32 s{sPub}, 0')
            a(f'{l}:')
    a(f'''  s_cmp_eq_u32 s{sPub}, 0
  s_cbranch_scc1 {pfx}_npub
  s_sub_u32 s{c.sT}, s{c.sS}, 1
  s_max_i32 s{c.sT}, s{c.sT}, 0
  v_mov_b32 v254, s{c.sT}
  s_mov_b32 s{sFo}, {FLG + F_PROG}
  buffer_store_dword v254, off, s[{c.sWS}:{c.sWS+3}], s{sFo} sc1
{pfx}_npub:
  s_cmp_lg_u32 s{c.sW}, 3
  s_cbranch_scc1 {pfx}_nkv
  s_and_b32 s{c.sT}, s{c.sS}, 7
  s_cmp_lg_u32 s{c.sT}, 5
  s_cbranch_scc1 {pfx}_nkv
  s_add_u32 s{c.sT}, s{c.sS}, 3
  s_lshr_b32 s{c.sT}, s{c.sT}, 3
  s_min_u32 s{c.sT}, s{c.sT}, 7
  s_lshl_b32 s{c.sT}, s{c.sT}, 7
  s_add_u32 s{sFo}, s{c.sT}, {FLG + F_KV}
  buffer_load_dword v253, off, s[{c.sWS}:{c.sWS+3}], s{sFo} sc1
{pfx}_nkv:''')
def pre_red1(a, pfx, fail):
    nk = 0 if cfg['nokv'] else 8
    a(f'''  s_cmp_lg_u32 s{c.sW}, 3
  s_cbranch_scc1 {pfx}_kvok
  s_and_b32 s{c.sT}, s{c.sS}, 7
  s_cmp_lg_u32 s{c.sT}, 5
  s_cbranch_scc1 {pfx}_kvok
  s_waitcnt vmcnt({nk})
  s_mov_b32 s{c.sBound}, {BOUND}
{pfx}_kvp:
  v_readfirstlane_b32 s{c.sT}, v253
  s_nop 0
  s_cmp_ge_u32 s{c.sT}, 32
  s_cbranch_scc1 {pfx}_kvok
  buffer_load_dword v253, off, s[{c.sWS}:{c.sWS+3}], s{sFo} sc1
  s_waitcnt vmcnt(0)
  s_sub_u32 s{c.sBound}, s{c.sBound}, 1
  s_cbranch_scc0 {pfx}_kvp
  s_branch {fail}
{pfx}_kvok:''')
if not cfg['chainonly']:
    chain.HOOK['after_a'] = after_a; chain.HOOK['pre_red1'] = pre_red1
BOUND2 = 200000
def stamp(a, k):
    l = a.label('L_st')
    tm = 's_memrealtime' if cfg['real'] else 's_memtime'
    ex = {1: 60, 4: 61, 7: 62}.get(k)
    exs = f'  s_sub_u32 s{ex}, {BOUND2}, s{c.sBound}\n' if ex else ''
    a(f'  s_cmp_eq_u32 s{c.sS}, {cfg["stamp"]}\n  s_cbranch_scc0 {l}\n  {tm} s[{64+2*k}:{65+2*k}]\n{exs}{l}:')
stf = stamp if cfg['stamp'] >= 0 else None
def chain_entry(mode, pfx):
    a(f'''  s_mov_b32 s{sPub}, 0
  s_add_u32 s50, s{c.sX}, s{c.sJ}
  s_cmp_lg_u32 s50, 0
  s_cbranch_scc1 {pfx}_np
  s_cmp_eq_u32 s{c.sW}, 2
  s_cselect_b32 s{sPub}, 1, 0
{pfx}_np:''')
    if cfg['par'] == 2:
        a(f'''  s_add_u32 s50, s{c.sX}, s{c.sJ}
  s_add_u32 s50, s50, s{c.sW}
  s_cmp_lg_u32 s50, 0
  s_cbranch_scc1 {pfx}_npr
  s_mov_b64 exec, 1
  s_mov_b32 s56, 0
  s_mov_b32 s57, 0
  s_waitcnt vmcnt(0)''')
        for i in range(4):
            for par in range(2):
                a(f'''  s_mov_b32 s51, {RC + 3*262144 + (3+4*i)*16384 + par*8192}
  s_memtime s[52:53]
  s_waitcnt lgkmcnt(0)
  buffer_store_dword v{c.vSent}, off, s[{c.sRG}:{c.sRG+3}], s51 sc1
  s_waitcnt vmcnt(0)
  s_memtime s[54:55]
  s_waitcnt lgkmcnt(0)
  s_sub_u32 s54, s54, s52
  s_add_u32 s{56+par}, s{56+par}, s54''')
        a(f'''  s_cmp_lt_u32 s57, s56
  s_cselect_b32 s56, 2, 1
  v_mov_b32 v16, {DBG_PAR}
  v_mov_b32 v17, s56
  global_store_dword v16, v17, s[{sDbg}:{sDbg+1}] sc1
  s_mov_b64 exec, -1
{pfx}_npr:
  v_mov_b32 v16, {DBG_PAR}
  s_mov_b32 s{c.sBound}, {BOUND}
{pfx}_pp:
  global_load_dword v17, v16, s[{sDbg}:{sDbg+1}] sc1
  s_waitcnt vmcnt(0)
  v_readfirstlane_b32 s50, v17
  s_nop 0
  s_cmp_lg_u32 s50, 0
  s_cbranch_scc1 {pfx}_ppok
  s_sub_u32 s{c.sBound}, s{c.sBound}, 1
  s_cbranch_scc0 {pfx}_pp
  s_branch L_fail
{pfx}_ppok:
  s_sub_u32 s50, s50, 1
  s_and_b32 s50, s50, 1
  s_lshl_b32 s50, s50, 13
  v_add_u32 v{c.vCst}, s50, v{c.vCst}
  v_add_u32 v{c.vCld}, s50, v{c.vCld}''')
    if not cfg['chainonly']:
        a(f'''  s_mov_b32 s{sFo}, {FLG + F_KV}
  s_mov_b32 s{c.sBound}, {BOUND}
{pfx}_kv0:
  buffer_load_dword v253, off, s[{c.sWS}:{c.sWS+3}], s{sFo} sc1
  s_waitcnt vmcnt(0)
  v_readfirstlane_b32 s50, v253
  s_nop 0
  s_cmp_ge_u32 s50, 32
  s_cbranch_scc1 {pfx}_kv0ok
  s_sub_u32 s{c.sBound}, s{c.sBound}, 1
  s_cbranch_scc0 {pfx}_kv0
  s_branch L_fail
{pfx}_kv0ok:''')
    if cfg['prof']:
        a('  s_memrealtime s[80:81]\n  s_memtime s[84:85]\n  s_waitcnt lgkmcnt(0)')
    dstamp(3, 160)
    emit_start(a, mode, 76)
    emit_loop(a, mode, pfx, 'L_fail', 'L_chain_done', stamp=stf)
a('L_chain_l:')
if cfg['nochain']:
    a(f'''  s_mov_b32 s50, {FLG + F_PROG}
  v_mov_b32 v16, 64
  buffer_store_dword v16, off, s[4:7], s50 sc1
  s_waitcnt vmcnt(0)
  s_branch L_end''')
chain_entry('L', 'LL')
a('L_chain_g:')
chain_entry('G', 'LG')
a(f'''L_chain_done:
  s_waitcnt vmcnt(0)
  s_barrier''')
dstamp(6, 160)
if cfg['prof']:
    a(f'''  s_memrealtime s[82:83]
  s_memtime s[86:87]
  s_waitcnt lgkmcnt(0)
  s_lshl_b32 s50, s{c.sX}, 5
  s_add_u32 s50, s50, s{c.sJ}
  s_lshl_b32 s50, s50, 2
  s_add_u32 s50, s50, s{c.sW}
  s_lshl_b32 s50, s50, 6
  s_add_u32 s50, s50, {200*MB}
  v_mov_b32 v1, s50
  s_sub_u32 s86, s86, s84''')
    for k in range(8): a(f'  v_mov_b32 v{2+k}, s{64+2*k}')
    a(f'''  v_mov_b32 v10, s86
  v_mov_b32 v11, s{sStamp}
  v_mov_b32 v12, s80
  v_mov_b32 v13, s82
  s_mov_b64 exec, 1
  buffer_store_dwordx4 v[2:5], v1, s[{c.sWS}:{c.sWS+3}], 0 offen
  buffer_store_dwordx4 v[6:9], v1, s[{c.sWS}:{c.sWS+3}], 0 offen offset:16
  buffer_store_dwordx4 v[10:13], v1, s[{c.sWS}:{c.sWS+3}], 0 offen offset:32
  v_mov_b32 v14, s60
  v_mov_b32 v15, s61
  v_mov_b32 v16, s62
  v_mov_b32 v17, 0
  buffer_store_dwordx4 v[14:17], v1, s[{c.sWS}:{c.sWS+3}], 0 offen offset:48
  s_mov_b64 exec, -1''')
a(f'''  s_cmp_lg_u32 s{c.sW}, 0
  s_cbranch_scc1 L_end
  s_mov_b32 s40, {FLG + F_CDONE}
  v_mov_b32 v1, s40
  v_mov_b32 v2, 1
  s_mov_b64 exec, 1
  buffer_atomic_add v2, v1, s[{c.sWS}:{c.sWS+3}], 0 offen sc0 sc1
  s_waitcnt vmcnt(0)
  v_readfirstlane_b32 s40, v2
  s_nop 0
  s_cmp_eq_u32 s40, 127
  s_cbranch_scc0 L_end
  s_mov_b32 s40, {FLG + F_PROG}
  v_mov_b32 v2, 64
  buffer_store_dword v2, off, s[{c.sWS}:{c.sWS+3}], s40 sc1
  s_waitcnt vmcnt(0)
  s_branch L_end''')

def wait_flag(off_const, sreg_idx, target, shift=7):
    l = a.label('L_wf')
    if sreg_idx is None: a(f'  s_mov_b32 s41, {FLG + off_const}')
    else: a(f'  s_lshl_b32 s41, s{sreg_idx}, {shift}\n  s_add_u32 s41, s41, {FLG + off_const}')
    a(f'''  s_cmp_lg_u32 s{T.sW}, 0
  s_cbranch_scc1 {l}_w
  s_mov_b32 s{sBnd}, {BOUND}
{l}_p:
  buffer_load_dword v1, off, {WS}, s41 sc1
  s_waitcnt vmcnt(0)
  v_readfirstlane_b32 s42, v1
  s_nop 0
  s_cmp_ge_u32 s42, {target}
  s_cbranch_scc1 {l}_w
  s_sub_u32 s{sBnd}, s{sBnd}, 1
  s_cbranch_scc0 {l}_p
  v_mov_b32 v1, {DBG_FAIL + 4}
  v_mov_b32 v2, 1
  s_mov_b64 exec, 1
  global_atomic_add v1, v2, s[{sDbg}:{sDbg+1}] sc1
  s_mov_b64 exec, -1
{l}_w:''')
sSig = 35
sBase = 32
sBulk = 77
NBIG = cfg['nbig']; DNJ = cfg['dnj']; DPER = 8 // DNJ; DTGT = 4*DPER
NFINE = cfg['nfine']
NSMALL = (32 - NFINE - 2*NBIG)*4
NA, ND, NW = 128, 8*DPER, NBIG + NSMALL + 16
REC_D, REC_A, REC_W = 160, 192, 320
a('L_tasks:')
a(f'  s_mov_b32 s{T.sW}, s{c.sW}')
a(f'  s_mov_b32 s{sSig}, -1')
a(f'  s_mov_b32 s{sBulk}, 0')
if cfg['dbgt']: a('  s_mov_b32 s76, 15')
a('L_next:')
a(f'''  s_waitcnt vmcnt(0)
  s_barrier
  s_cmp_lg_u32 s{T.sW}, 0
  s_cbranch_scc1 L_next_w
  s_mov_b64 exec, 1''')
if cfg['prof']:
    a(f'''  s_cmp_eq_u32 s{sSig}, -1
  s_cbranch_scc1 L_nprof
  s_memrealtime s[82:83]
  s_memtime s[74:75]
  s_lshl_b32 s40, s{sQ}, 9
  s_add_u32 s40, s40, s{sTkt}
  s_lshl_b32 s40, s40, 5
  s_add_u32 s40, s40, {201*MB}
  s_waitcnt lgkmcnt(0)
  s_sub_u32 s41, s88, s86
  v_mov_b32 v8, s41
  s_sub_u32 s41, s74, s88
  v_mov_b32 v9, s41
  s_sub_u32 s41, s74, s86
  v_mov_b32 v10, s41
  v_mov_b32 v11, 0
  s_add_u32 s41, s40, 16
  buffer_store_dwordx4 v[8:11], off, {WS}, s41
  v_mov_b32 v12, s80
  v_mov_b32 v13, s84
  v_mov_b32 v14, s82
  s_lshl_b32 s41, s{sXcc}, 8
  s_add_u32 s41, s41, s{sTk}
  v_mov_b32 v15, s41
  buffer_store_dwordx4 v[12:15], off, {WS}, s40
L_nprof:''')
if cfg['dbgt']:
    a(f'''  s_memrealtime s[100:101]
  s_waitcnt lgkmcnt(0)
  s_lshl_b32 s40, s76, 2
  v_mov_b32 v1, s40
  v_mov_b32 v2, s100
  global_atomic_umax v1, v2, s[{sDbg}:{sDbg+1}] sc1''')
a(f'''  s_cmp_eq_u32 s{sSig}, -1
  s_cbranch_scc1 L_nosig
  s_add_u32 s40, s{sSig}, {FLG}
  v_mov_b32 v1, s40
  v_mov_b32 v2, 1
  buffer_atomic_add v2, v1, {WS}, 0 offen sc1
L_nosig:
  s_lshl_b32 s40, s{sQ}, 5
  s_add_u32 s40, s40, {DBG_QUEUE}
  v_mov_b32 v1, s40
  v_mov_b32 v2, 1
  global_atomic_add v3, v1, v2, s[{sDbg}:{sDbg+1}] sc0 sc1
  s_waitcnt vmcnt(0)
  v_mov_b32 v1, {LDS_TK}
  ds_write_b32 v1, v3 offset:16
  s_waitcnt lgkmcnt(0)
  s_mov_b64 exec, -1
L_next_w:
  s_barrier
  v_mov_b32 v1, {LDS_TK}
  ds_read_b32 v3, v1 offset:16
  s_waitcnt lgkmcnt(0)
  v_readfirstlane_b32 s{sTkt}, v3''')
if cfg['prof']: a('  s_memrealtime s[80:81]\n  s_waitcnt lgkmcnt(0)')
from tasklist import build_leaves
LEAVES = build_leaves(eval(cfg['bulk']), NBIG, cfg['lag'], DPER, NFINE)
DW = dict(KV=8, GU=9, WOF=9, Q=14, D=10, A=7, W=7)
starts = []; start = 0
for lf in LEAVES: starts.append(start); start += lf[3]
NTASK = start
assert NTASK <= 512
def emit_leaf(k):
    ty, p0, p1, cnt = LEAVES[k]
    if cfg['dbgt']: a(f'  s_mov_b32 s76, {DW[ty]}')
    if ty in ('KV', 'Q', 'GU'):
        a(f'''  s_sub_u32 s{sIdx}, s{sTkt}, {starts[k]}
  s_and_b32 s{T.sM}, s{sIdx}, {(1 << p1) - 1}
  s_add_u32 s{T.sM}, s{T.sM}, {p0}
  s_lshr_b32 s{sIdx}, s{sIdx}, {p1}
  s_branch T_{ty}''')
    else:
        d = p0 - starts[k]
        a(f'  s_add_u32 s{sIdx}, s{sTkt}, {d}' if d >= 0 else f'  s_sub_u32 s{sIdx}, s{sTkt}, {-d}')
        a(f'  s_branch T_{ty}')
def emit_tree(lo, hi):
    if hi - lo == 1: emit_leaf(lo); return
    mid = (lo + hi) // 2
    l = a.label('L_tr')
    a(f'  s_cmp_lt_u32 s{sTkt}, {starts[mid]}\n  s_cbranch_scc0 {l}')
    emit_tree(lo, mid)
    a(f'{l}:')
    emit_tree(mid, hi)
a(f'  s_cmp_ge_u32 s{sTkt}, {NTASK}\n  s_cbranch_scc1 L_end')
emit_tree(0, len(LEAVES))
print('tasks per queue', NTASK, 'leaves', len(LEAVES))
import json
json.dump(dict(leaves=[(lf[0], lf[1], lf[2], lf[3], st) for lf, st in zip(LEAVES, starts)], nbig=NBIG, dper=DPER), open(out + '.json', 'w'))
def mark():
    if cfg['prof']: a('  s_memrealtime s[84:85]\n  s_memtime s[86:87]\n  s_memtime s[88:89]\n  s_waitcnt lgkmcnt(0)')
def mark2():
    if cfg['prof']: a('  s_memtime s[88:89]\n  s_waitcnt lgkmcnt(0)')
a(f'''T_KV:
  s_and_b32 s41, s{sIdx}, 3
  s_lshl_b32 s{T.sN}, s{sQ}, 2
  s_add_u32 s{T.sN}, s{T.sN}, s41
  s_lshl_b32 s{sSig}, s{T.sM}, 7
  s_add_u32 s{sSig}, s{sSig}, {F_KV}
  s_cmp_ge_u32 s{sIdx}, 4
  s_cbranch_scc1 T_V''')
emit_gemm_params(a, TY_K)
a(f'  s_mov_b32 s{sBase}, {K}\n  s_mov_b32 s{T.sTy}, 0\n  s_branch G_n')
a(f'''T_Q:
  s_lshl_b32 s{T.sN}, s{sQ}, 2
  s_add_u32 s{T.sN}, s{T.sN}, s{sIdx}
  s_lshl_b32 s{sSig}, s{T.sM}, 7
  s_add_u32 s{sSig}, s{sSig}, {F_Q}''')
emit_gemm_params(a, TY_Q)
a(f'  s_mov_b32 s{sBase}, {Q}\n  s_mov_b32 s{T.sTy}, 0\n  s_branch G_n')
a(f'''T_GU:
  s_mul_i32 s{T.sN}, s{sQ}, 7
  s_add_u32 s{T.sN}, s{T.sN}, s{sIdx}
  s_lshl_b32 s{sSig}, s{T.sM}, 7
  s_add_u32 s{sSig}, s{sSig}, {F_GU}''')
emit_gemm_params(a, TY_GU)
a(f'  s_mov_b32 s{T.sTy}, 2\n  s_branch G_n')
a(f'''T_D:
  s_lshr_b32 s{T.sM}, s{sIdx}, {DPER - 1}
  s_and_b32 s40, s{sIdx}, {DPER - 1}
  s_lshl_b32 s{T.sN}, s{sQ}, {DPER - 1}
  s_add_u32 s{T.sN}, s{T.sN}, s40
  s_lshl_b32 s{sSig}, s{T.sM}, 7
  s_add_u32 s{sSig}, s{sSig}, {F_D}''')
if cfg['dbgt']: a('  s_mov_b32 s76, 10')
wait_flag(F_GU, T.sM, 28)
a('  s_barrier')
if DNJ == 4:
    emit_gemm_params(a, TY_D2)
    mark()
    emit_gemm_main(a, False, 'G_d', nj=4); mark2()
    emit_epi_d(a, SC, nj=4); a('  s_branch L_next')
else:
    emit_gemm_params(a, TY_D)
    a(f'  s_mov_b32 s{T.sTy}, 3')
a('G_n:'); mark()
emit_gemm_main(a, False, 'G_n'); mark2()
a(f'''  s_cmp_eq_u32 s{T.sTy}, 2
  s_cbranch_scc1 G_egu''')
if DNJ == 8: a(f'  s_cmp_eq_u32 s{T.sTy}, 3\n  s_cbranch_scc1 G_ed')
emit_epi_kq(a, f's{sBase}', SC); a('  s_branch L_next')
a('G_egu:'); emit_epi_gu(a, SC); a('  s_branch L_next')
if DNJ == 8: a('G_ed:'); emit_epi_d(a, SC); a('  s_branch L_next')
a('T_V:'); emit_gemm_params(a, TY_V); mark(); emit_gemm_main(a, True, 'G_s'); mark2(); emit_epi_v(a, SC); a('  s_branch L_next')
a(f'''T_WOF:
  s_mov_b32 s{sSig}, {F_WOF}
  s_lshl_b32 s{T.sM}, s{sQ}, 5
  s_lshl_b32 s40, s{sIdx}, 3
  s_add_u32 s{T.sM}, s{T.sM}, s40
  s_add_u32 s{T.sN}, s{T.sM}, 8''')
mark()
a('T_WOF_l:')
emit_wo_repack(a, T.sM, SC)
a(f'''  s_add_u32 s{T.sM}, s{T.sM}, 1
  s_cmp_lt_u32 s{T.sM}, s{T.sN}
  s_cbranch_scc1 T_WOF_l
  s_branch L_next''')
a(f'''T_A:
  s_lshr_b32 s{T.sM}, s{sIdx}, 2        ; block c
  s_lshl_b32 s{sSig}, s{T.sM}, 7
  s_add_u32 s{sSig}, s{sSig}, {F_O}
  s_and_b32 s40, s{sIdx}, 1
  s_lshl_b32 s41, s{sQ}, 1
  s_add_u32 s{T.sN}, s41, s40
  s_lshr_b32 s{T.sM}, s{sIdx}, 1        ; segment
  s_lshr_b32 s{T.sTy}, s{T.sM}, 3''')
if cfg['dbgt']: a('  s_mov_b32 s76, 7')
wait_flag(F_Q, T.sTy, 16)
a(f'  s_add_u32 s{T.sTy}, s{T.sM}, 1')
l = a.label('L_wp')
a(f'''  s_mov_b32 s41, {FLG + F_PROG}
  s_cmp_lg_u32 s{T.sW}, 0
  s_cbranch_scc1 {l}_w
  s_mov_b32 s{sBnd}, {BOUND}
{l}_p:
  buffer_load_dword v1, off, {WS}, s41 sc1
  s_waitcnt vmcnt(0)
  v_readfirstlane_b32 s42, v1
  s_nop 0
  s_cmp_ge_u32 s42, s{T.sTy}
  s_cbranch_scc1 {l}_w
  s_sub_u32 s{sBnd}, s{sBnd}, 1
  s_cbranch_scc0 {l}_p
  v_mov_b32 v1, {DBG_FAIL + 8}
  v_mov_b32 v2, 1
  s_mov_b64 exec, 1
  global_atomic_add v1, v2, s[{sDbg}:{sDbg+1}] sc1
  s_mov_b64 exec, -1
{l}_w:
  s_barrier''')
mark()
emit_attn(a, T.sM, T.sN, SC)
a('  s_branch L_next')
def wo_waits(sBlk):
    wait_flag(F_WOF, None, 16)
    a(f'  s_lshr_b32 s{T.sTy}, s{sBlk}, 2')
    wait_flag(F_D, T.sTy, DTGT)
    wait_flag(F_O, sBlk, 16)
    a('  s_barrier')
a(f'''T_W:
  s_mov_b32 s{sSig}, {F_CDONE + 128}''')
if cfg['dbgt']: a('  s_mov_b32 s76, 7')
a(f'''  s_cmp_ge_u32 s{sIdx}, {NBIG + NSMALL}
  s_cbranch_scc1 T_W31
  s_cmp_ge_u32 s{sIdx}, {NBIG}
  s_cbranch_scc1 T_W30
  s_lshl_b32 s{T.sM}, s{sIdx}, 1
  s_lshl_b32 s{T.sN}, s{sQ}, 4''')
wait_flag(F_O, T.sM, 16)
a(f'  s_add_u32 s{T.sM}, s{T.sM}, 1')
wo_waits(T.sM)
a(f'  s_lshl_b32 s{T.sM}, s{sIdx}, 3')
mark()
emit_wo_big(a, T.sM, T.sN, 'W_big')
a('  s_branch L_next')
a(f'''T_W30:
  s_sub_u32 s40, s{sIdx}, {NBIG}
  s_lshr_b32 s{T.sM}, s40, 2
  s_add_u32 s{T.sM}, s{T.sM}, {2*NBIG}
  s_and_b32 s40, s40, 3
  s_lshl_b32 s{T.sN}, s{sQ}, 2
  s_add_u32 s{T.sN}, s{T.sN}, s40
  s_lshl_b32 s{T.sN}, s{T.sN}, 2''')
wo_waits(T.sM)
a(f'  s_lshl_b32 s{T.sM}, s{T.sM}, 2')
mark()
emit_wo_gemm(a, T.sM, T.sN, 4, 4)
a('  s_branch L_next')
a(f'''T_W31:
  s_sub_u32 s{sIdx}, s{sIdx}, {NBIG + NSMALL}
  s_lshr_b32 s{T.sM}, s{sIdx}, 4
  s_add_u32 s{T.sM}, s{T.sM}, {32 - NFINE}''')
wo_waits(T.sM)
a(f'''  s_bfe_u32 s40, s{sIdx}, 0x10003
  s_lshl_b32 s40, s40, 1
  s_lshl_b32 s{T.sM}, s{T.sM}, 2
  s_add_u32 s{T.sM}, s{T.sM}, s40
  s_and_b32 s40, s{sIdx}, 7
  s_lshl_b32 s{T.sN}, s{sQ}, 3
  s_add_u32 s{T.sN}, s{T.sN}, s40
  s_lshl_b32 s{T.sN}, s{T.sN}, 1''')
mark()
emit_wo_gemm(a, T.sM, T.sN, 2, 2, depth=8)
a('  s_branch L_next')
a(f'''L_fail:
  v_mov_b32 v1, {DBG_FAIL}
  v_mov_b32 v2, 1
  s_mov_b64 exec, 1
  global_atomic_add v1, v2, s[{sDbg}:{sDbg+1}] sc1
  s_waitcnt vmcnt(0)
L_end:
  s_endpgm''')
a(kernel_desc(NAME, 512, accum=256))
open(out, 'w').write(a.text())
check_local(out, NAME)
```
